```python
import torch

def _softmax(x, axis=-1):
    return torch.softmax(x, dim=axis)

def _gelu(x):
    return torch.nn.functional.gelu(x, approximate='tanh')

def _silu(x):
    return torch.nn.functional.silu(x)

def _sigmoid(x):
    return torch.sigmoid(x)

def _layernorm(x, axis=-1, eps=1e-05):
    m = x.mean(dim=axis, keepdim=True)
    v = x.var(dim=axis, keepdim=True, unbiased=False)
    return (x - m) / torch.sqrt(v + eps)

def _scatter_add(tgt, idx, src, axis=0):
    return tgt.clone().index_add_(axis, idx, src)

def _segment_sum(src, seg, n):
    out = torch.zeros((n,) + src.shape[1:], dtype=src.dtype)
    return out.index_add_(0, seg, src)

def _pad(x, pw):
    flat = tuple((v for pair in reversed(pw) for v in pair))
    return torch.nn.functional.pad(x, flat)
kernel_name = 'standalone__autoregressive_conv_wavenet__speech'

def setup_inputs():

    _w = lambda a: (lambda t: t.to(torch.bfloat16) if t.is_floating_point() else t)(torch.as_tensor(a))
    B, T, D, K = (2, 4000, 144, 15)
    return {'x': _w((lambda *s: torch.randn(*s, dtype=torch.bfloat16) * 0.1)(B, T, D)), 'w': _w((lambda *s: torch.randn(*s, dtype=torch.bfloat16) * 0.1)(K, D, 2 * D)), 'w_o': _w((lambda *s: torch.randn(*s, dtype=torch.bfloat16) * 0.05)(D, D))}

def reference(x, w, w_o):
    B, T, D = x.shape
    K = w.shape[0]
    dil = 2
    pad = (K - 1) * dil
    xp = _pad(x, ((0, 0), (pad, 0), (0, 0)))
    h = torch.einsum('btc,cd->btd', xp[:, pad:pad + T, :], w[0])
    for i in range(1, K):
        off = pad - i * dil
        h = h + torch.einsum('btc,cd->btd', xp[:, off:off + T, :], w[i])
    f = h[..., :D].clone()
    g = h[..., D:].clone()
    z = torch.tanh(f) * _sigmoid(g)
    return z @ w_o
```

```python
import sys

NAME = "standalone__autoregressive_conv_wavenet__speech"
T, D, KT = 4000, 144, 15
XB = T * D * 2
WB = KT * D * 2 * D * 2
WOB = D * D * 2
RING = 32
XBASE = RING * 2048
NXI = 89
LDS1 = XBASE + NXI * 1024
INBOX = 18432
LOG2E = 1.4426950408889634


def f2u(f):
    import struct
    return struct.unpack("<I", struct.pack("<f", f))[0]


class Asm:
    def __init__(self):
        self.l = []

    def __call__(self, s):
        for x in s.strip("\n").split("\n"):
            self.l.append(x if x.strip().endswith(":") or x.startswith(".") or x.startswith(";") else "    " + x.strip())

    def text(self):
        return "\n".join(self.l) + "\n"


def vr(b, n=4):
    return f"v[{b}:{b+n-1}]"


def kd(name, vgpr, sgpr):
    return f"""
.section .rodata,"a"
.p2align 6
.amdhsa_kernel {name}
  .amdhsa_next_free_vgpr {vgpr}
  .amdhsa_next_free_sgpr {sgpr}
  .amdhsa_accum_offset {(vgpr+3)//4*4}
  .amdhsa_group_segment_fixed_size 0
  .amdhsa_kernarg_size 48
  .amdhsa_user_sgpr_count 2
  .amdhsa_user_sgpr_kernarg_segment_ptr 1
  .amdhsa_system_sgpr_workgroup_id_x 1
.end_amdhsa_kernel
"""


def wg_map(A, lab_exit):
    A(f"""
    s_cmp_ge_u32 s2, 256
    s_cbranch_scc1 {lab_exit}
    s_and_b32 s42, s2, 7
    s_lshr_b32 s43, s2, 3
    s_mul_i32 s44, s42, 27
    s_add_u32 s44, s44, s43
    s_mul_i32 s45, s42, 5
    s_add_u32 s45, s45, s43
    s_add_u32 s45, s45, {216 - 27}
    s_cmp_ge_u32 s43, 27
    s_cselect_b32 s44, s45, s44
    s_cmp_ge_u32 s44, 252
    s_cbranch_scc1 {lab_exit}
    s_mul_hi_u32 s40, s44, 0x1c71c71d ; /9
    s_mul_i32 s45, s40, 9
    s_sub_u32 s41, s44, s45
    """)


def steps_list():
    st = []
    for cc in range(4):
        for i in range(15):
            st.append(("c", cc, i))
    for m in range(8):
        st.append(("r", 4, 2 * m))
    return st


def w_soff(step, u):
    kind, cc, i = step
    if kind == "c":
        return (i * 144 + 32 * cc + 16 * u) * 576
    return ((i + u) * 144 + 128) * 576


def gen_conv(A, stamps=False):
    name = "conv_kernel"
    st = steps_list()
    NS = len(st)
    P = 6
    ACC = 8
    XW = 44
    WF = 136
    vX, vY, vY2, vW, vT, vSt = 148, 149, 150, 151, 152, 153
    vB, vG = 154, 155
    TMP = 156
    A(f"""
.text
.globl {name}
.p2align 8
.type {name},@function
{name}:
    s_load_dwordx4 s[4:7], s[0:1], 0
    s_load_dwordx2 s[8:9], s[0:1], 40
    """)
    if stamps:
        A("""
    s_load_dwordx2 s[70:71], s[0:1], 32
    s_memtime s[60:61]
    s_memrealtime s[72:73]
    """)
    wg_map(A, "L_conv_end")
    A(f"""
    s_getpc_b64 s[46:47]
    v_lshlrev_b32 v1, 7, v0
    v_cmp_gt_u32 vcc, 128, v0
    s_and_saveexec_b64 s[48:49], vcc
    s_cbranch_execz L_conv_nopf
    global_load_dword v7, v1, s[46:47]
L_conv_nopf:
    s_mov_b64 exec, s[48:49]
    v_lshrrev_b32 v1, 6, v0
    v_and_b32 v2, 63, v0              ; lane
    s_nop 0
    v_readfirstlane_b32 s3, v1
    s_cmp_ge_u32 s40, 14
    s_cselect_b32 s42, 1, 0           ; b
    s_mul_i32 s43, s42, 14
    s_sub_u32 s43, s40, s43           ; tt
    s_mul_i32 s44, s42, {XB}
    s_mul_i32 s45, s43, {288*288}
    s_sub_u32 s45, s45, {28*288}
    s_waitcnt lgkmcnt(0)
    s_add_u32 s12, s4, s44            ; x srd s[12:15]
    s_addc_u32 s13, s5, 0
    s_and_b32 s13, s13, 0xffff
    s_mov_b32 s14, {XB}
    s_mov_b32 s15, 0x20000
    s_mov_b32 s16, s6                 ; w srd s[16:19]
    s_and_b32 s17, s7, 0xffff
    s_mov_b32 s18, {WB}
    s_mov_b32 s19, 0x20000
    s_mov_b32 s20, s8
    s_and_b32 s21, s9, 0xffff
    s_mov_b32 s22, {28*9*INBOX}
    s_mov_b32 s23, 0x20000
    s_cmp_eq_u32 s3, 4
    s_cbranch_scc1 L_loader
    """)
    A(f"""
    s_lshl_b32 s46, s3, 10
    s_add_u32 s47, s46, s45
    v_lshlrev_b32 v3, 4, v2
    v_add_u32 v3, s47, v3
    s_add_u32 s46, s46, {XBASE}
    s_mov_b32 m0, s46
    s_nop 0
    """)
    nper = (NXI + 3) // 4
    for k in range(nper):
        if k == nper - 1 and NXI % 4:
            A(f"""
    s_cmp_ge_u32 s3, {NXI % 4}
    s_cbranch_scc1 L_xdone
    """)
        A(f"buffer_load_dwordx4 v3, s[12:15], 0 offen lds")
        if k < nper - 1:
            A(f"""
    s_add_u32 m0, m0, 4096
    v_add_u32 v3, 4096, v3
    """)
    A("L_xdone:")
    A("s_barrier")
    A(f"""
    s_and_b32 s50, s3, 1              ; p
    s_lshr_b32 s51, s3, 1             ; nh
    v_and_b32 v4, 15, v2              ; r
    v_lshrrev_b32 v5, 4, v2           ; q
    v_mul_u32_u24 v{vX}, 5184, v4
    s_mul_i32 s52, s50, 288
    s_add_u32 s52, s52, {XBASE}
    v_add_u32 v{vX}, s52, v{vX}
    v_and_b32 v6, 1, v5
    v_lshlrev_b32 v6, 4, v6
    v_add3_u32 v{vY2}, v{vX}, v6, 64
    v_add_u32 v{vY2}, 192, v{vY2}      ; + 256 + 16*(q&1)
    v_lshrrev_b32 v6, 1, v5
    v_mul_u32_u24 v6, 576, v6
    v_sub_u32 v{vY}, v{vY2}, v6
    v_lshl_add_u32 v{vX}, v5, 4, v{vX}
    v_lshlrev_b32 v{vW}, 9, v5
    v_bfe_u32 v6, v2, 2, 2
    v_lshl_add_u32 v{vW}, v6, 6, v{vW}
    v_and_b32 v6, 1, v5
    v_xor_b32 v6, s51, v6
    v_lshl_add_u32 v{vW}, v6, 5, v{vW}
    v_and_b32 v6, 3, v2
    v_lshl_add_u32 v{vW}, v6, 3, v{vW}
    v_and_b32 v6, 31, v2
    v_lshlrev_b32 v{vSt}, 4, v6
    v_lshrrev_b32 v6, 5, v2
    v_mul_u32_u24 v6, {INBOX}, v6
    v_add_u32 v{vSt}, v{vSt}, v6
    s_lshl_b32 s53, s41, 1
    s_add_u32 s53, s53, s51           ; ntile
    s_mul_i32 s54, s40, {9*INBOX}
    s_mul_i32 s55, s50, 9216
    s_add_u32 s54, s54, s55
    s_lshl_b32 s55, s53, 9
    s_add_u32 s54, s54, s55
    s_cmp_lt_u32 s53, 9
    s_mov_b32 s56, {f2u(-LOG2E)}
    s_cselect_b32 s56, {f2u(-2*LOG2E)}, s56
    s_cselect_b32 s57, 2.0, 1.0
    s_cselect_b32 s58, -1.0, 0
    v_mov_b32 v{vB}, s57
    v_mov_b32 v{vG}, s58
    s_waitcnt vmcnt(0)
    s_barrier
    """)
    if stamps:
        A("s_memtime s[62:63]\ns_waitcnt lgkmcnt(0)")

    def xslot(e):
        return XW + 4 * (8 - e)

    def xread(kind, cc, e):
        off = (28 + 2 * e) * 288
        if kind == "c":
            return f"ds_read_b128 {vr(xslot(e))}, v{vX} offset:{off + 64*cc}"
        return f"ds_read_b128 {vr(xslot(e))}, v{vY2 if e == -14 else vY} offset:{off}"

    def wread(s):
        b = WF + 4 * (s % 3)
        o = (s % RING) * 2048
        return [f"ds_read_b64_tr_b16 {vr(b,2)}, v{vW} offset:{o}",
                f"ds_read_b64_tr_b16 {vr(b+2,2)}, v{vW} offset:{o+256}"]

    reads = [[] for _ in range(NS)]
    pre = []
    need = [set() for _ in range(NS)]
    for s, (kind, cc, i) in enumerate(st):
        need[s].add(("w", s))
        for j in range(9):
            need[s].add(("x", cc, j - i))
    for s in range(NS):
        tgt = pre if s < 2 else reads[s - 2]
        for k, tx in enumerate(wread(s)):
            tgt.append((("w", s), tx))
    for cc in range(5):
        kind = "c" if cc < 4 else "r"
        base = 15 * cc
        for e in range(8, -15, -1):
            if e >= 0:
                at = base - 15 + 5 + (8 - e)
            elif kind == "c":
                at = base + (-e) - 2
            else:
                first = base + (-e + 1) // 2
                at = max(first - 2, base - 1 if e == -1 else base)
            tx = xread(kind, cc, e)
            if cc == 0 and at < 0 or (cc == 0 and e >= 0):
                pre.insert(0 if e >= 0 else len(pre), (("x", cc, e), tx))
            elif kind == "r" and e == -2:
                reads[at].insert(0, (("x", cc, e), tx))
            else:
                reads[at].append((("x", cc, e), tx))
    L0 = P
    bar_at = {}
    L = L0
    bl = []
    while L < NS:
        bar_at[L - 2] = True
        bl.append((L - 2, min(L + P, NS)))
        L += P
    queue = []
    for tag, tx in pre:
        A(tx)
        queue.append(tag)
    for s, (kind, cc, i) in enumerate(st):
        idx = max([k for k, tg in enumerate(queue) if tg in need[s]], default=-1)
        rem = len(queue) - 1 - idx
        if idx >= 0:
            assert rem <= 15
            A(f"s_waitcnt lgkmcnt({rem})")
            queue = queue[idx + 1:]
        if s in bar_at:
            A("s_barrier")
        rd = list(reads[s])
        for n, j in enumerate(range(8, -1, -1)):
            c = vr(ACC + 4 * j) if s > 0 else "0"
            A(f"v_mfma_f32_16x16x32_bf16 {vr(ACC+4*j)}, {vr(WF+4*(s%3))}, {vr(xslot(j-i))}, {c}")
            if rd and n >= 0:
                tag, tx = rd.pop(0)
                A(tx)
                queue.append(tag)
        assert not rd
    if stamps:
        A("s_memtime s[64:65]")
    A("s_nop 7")

    def act(j, dst):
        a = ACC + 4 * j
        for k in range(4):
            A(f"v_mul_f32 v{a+k}, s56, v{a+k}")
        for k in range(4):
            A(f"v_exp_f32 v{a+k}, v{a+k}")
        for k in range(4):
            A(f"v_add_f32 v{a+k}, 1.0, v{a+k}")
        for k in range(4):
            A(f"v_rcp_f32 v{a+k}, v{a+k}")
        for k in range(4):
            A(f"v_fma_f32 v{a+k}, v{a+k}, v{vB}, v{vG}")
        A(f"v_cvt_pk_bf16_f32 v{dst}, v{a}, v{a+1}")
        A(f"v_cvt_pk_bf16_f32 v{dst+1}, v{a+2}, v{a+3}")

    for pr, j in enumerate([8, 6, 4, 2, 0]):
        t = TMP + 4 * (pr % 4)
        if j == 8:
            act(8, t)
            A(f"""
    v_mov_b32 v{t+2}, v{t}
    v_mov_b32 v{t+3}, v{t+1}
    """)
        else:
            act(j, t)
            act(j + 1, t + 2)
        A(f"""
    s_add_u32 s55, s54, {j*INBOX}
    s_nop 0
    v_permlane32_swap_b32 v{t}, v{t+2}
    v_permlane32_swap_b32 v{t+1}, v{t+3}
    """)
        if j == 8:
            A("s_mov_b32 exec_hi, 0")
        A(f"buffer_store_dwordx4 {vr(t)}, v{vSt}, s[20:23], s55 offen")
        if j == 8:
            A("s_mov_b32 exec_hi, -1")
    if stamps:
        A(f"""
    s_waitcnt vmcnt(0)
    s_memtime s[66:67]
    s_memrealtime s[74:75]
    s_waitcnt lgkmcnt(0)
    s_cmp_eq_u32 s3, 0
    s_cbranch_scc0 L_conv_end
    s_sub_u32 s62, s62, s60
    s_sub_u32 s64, s64, s60
    s_sub_u32 s66, s66, s60
    v_mov_b32 v8, s62
    v_mov_b32 v9, s64
    v_mov_b32 v10, s66
    v_mov_b32 v11, s72
    v_mov_b32 v12, s74
    v_mov_b32 v13, s2
    v_mov_b32 v14, s2
    v_mov_b32 v15, s2
    s_mov_b32 s22, 0x10000000
    s_lshl_b32 s55, s2, 5
    s_add_u32 s55, s55, 0x8000000
    v_mov_b32 v16, 0
    s_mov_b64 exec, 1
    buffer_store_dwordx4 v[8:11], v16, s[20:23], s55 offen
    buffer_store_dwordx4 v[12:15], v16, s[20:23], s55 offen offset:16
    """)
    A("s_endpgm")
    A(f"""
L_loader:
    v_lshrrev_b32 v3, 2, v2
    v_mul_u32_u24 v3, 576, v3
    v_lshrrev_b32 v4, 5, v2
    v_lshlrev_b32 v4, 1, v4
    v_and_b32 v5, 3, v2
    v_xor_b32 v4, v4, v5
    v_lshl_add_u32 v3, v4, 4, v3
    s_lshl_b32 s46, s41, 6
    """)
    issued = 0

    def issue(upto):
        nonlocal issued
        while issued < upto:
            for u in range(2):
                A(f"""
    s_mov_b32 m0, {(issued % RING)*2048 + 1024*u}
    s_add_u32 s47, s46, {w_soff(st[issued], u)}
    buffer_load_dwordx4 v3, s[16:19], s47 offen lds
    """)
            issued += 1

    issue(2)
    A("s_barrier")
    DEPTH = 26
    issue(min(DEPTH, NS))
    A(f"s_waitcnt vmcnt({2*(issued - L0)})")
    A("s_barrier")
    prev_c = -1
    for (c, Lk) in bl:
        issue(min(prev_c + RING + 1, NS, Lk + DEPTH - P))
        A(f"s_waitcnt vmcnt({2*(issued - Lk)})")
        A("s_barrier")
        prev_c = c
    A("""
L_conv_end:
    s_endpgm
    """)
    return kd(name, 176, 80)


def gen_proj(A):
    name = "proj_kernel"
    ZA = 8
    ZS = 28
    WO = 48
    ACC = 140
    T0 = 160
    A(f"""
.text
.globl {name}
.p2align 8
.type {name},@function
{name}:
    s_load_dwordx4 s[4:7], s[0:1], 16
    s_load_dwordx2 s[8:9], s[0:1], 40
    """)
    wg_map(A, "L_proj_end")
    A(f"""
    v_lshrrev_b32 v1, 6, v0
    v_and_b32 v2, 63, v0
    s_nop 0
    v_readfirstlane_b32 s3, v1
    s_cmp_ge_u32 s40, 14
    s_cselect_b32 s42, 1, 0           ; b
    s_mul_i32 s43, s42, 14
    s_sub_u32 s43, s40, s43           ; tt
    s_mul_i32 s44, s42, {XB}
    s_and_b32 s50, s3, 1              ; p
    s_lshr_b32 s51, s3, 1             ; dh
    s_mul_i32 s54, s40, 9
    s_add_u32 s54, s54, s41
    s_mul_i32 s54, s54, {INBOX}
    s_mul_i32 s55, s50, 9216
    s_add_u32 s54, s54, s55           ; inbox + p*9216
    s_add_u32 s55, s54, 4608
    v_lshlrev_b32 v3, 4, v2
    v_and_b32 v4, 31, v2
    v_lshlrev_b32 v4, 4, v4
    v_lshrrev_b32 v5, 5, v2
    v_lshl_add_u32 v4, v5, 3, v4
    v_add_u32 v4, 4096, v4
    s_waitcnt lgkmcnt(0)
    s_mov_b32 s16, s4                 ; w_o srd
    s_and_b32 s17, s5, 0xffff
    s_mov_b32 s18, {WOB}
    s_mov_b32 s19, 0x20000
    s_add_u32 s12, s6, s44
    s_addc_u32 s13, s7, 0
    s_and_b32 s13, s13, 0xffff
    s_mov_b32 s14, {XB}
    s_mov_b32 s15, 0x20000
    s_mov_b32 s20, s8
    s_and_b32 s21, s9, 0xffff
    s_mov_b32 s22, {28*9*INBOX}
    s_mov_b32 s23, 0x20000
    s_lshl_b32 s46, s3, 10
    s_mov_b32 m0, s46
    s_nop 0
    """)
    for k in range(11):
        if k == 10:
            A("s_cmp_ge_u32 s3, 1\ns_cbranch_scc1 L_wodone")
        A("buffer_load_dwordx4 v3, s[16:19], s46 offen lds")
        if k < 10:
            A("s_add_u32 s46, s46, 4096\ns_mov_b32 m0, s46\ns_nop 0")
    A("L_wodone:")
    for ks in range(4):
        A(f"buffer_load_dwordx4 {vr(ZA+4*ks)}, v3, s[20:23], s54 offen offset:{1024*ks}")
        A(f"buffer_load_dwordx4 {vr(ZS+4*ks)}, v3, s[20:23], s55 offen offset:{1024*ks}")
    A(f"buffer_load_dwordx2 {vr(ZA+16,2)}, v4, s[20:23], s54 offen")
    A(f"buffer_load_dwordx2 {vr(ZS+16,2)}, v4, s[20:23], s55 offen")
    A(f"""
    v_lshrrev_b32 v5, 4, v2           ; q
    v_and_b32 v6, 1, v5
    v_lshlrev_b32 v6, 2, v6           ; 4*(q&1)
    v_bfe_u32 v7, v2, 2, 2
    v_add_u32 v6, v6, v7              ; 4*(q&1) + r'
    v_lshrrev_b32 v7, 1, v5           ; q>>1
    v_lshl_add_u32 v{T0}, v7, 4, v6
    v_lshl_add_u32 v{T0+1}, v7, 3, v6
    v_mul_u32_u24 v{T0}, 288, v{T0}
    v_mul_u32_u24 v{T0+1}, 288, v{T0+1}
    v_and_b32 v7, 3, v2               ; c
    v_lshl_add_u32 v{T0+2}, v7, 3, v{T0}     ; tile 8: 8c
    v_lshl_add_u32 v{T0+3}, v7, 3, v{T0+1}
    v_lshl_add_u32 v{T0}, v7, 4, v{T0}
    v_lshl_add_u32 v{T0+1}, v7, 4, v{T0+1}
    s_lshl_b32 s52, s51, 7
    v_add_u32 v{T0}, s52, v{T0}
    v_add_u32 v{T0+1}, s52, v{T0+1}
    v_and_b32 v6, 15, v2
    v_mul_u32_u24 v6, 5184, v6
    s_mul_i32 s53, s43, 288
    s_add_u32 s53, s53, s50
    s_lshl_b32 s56, s41, 1
    s_add_u32 s53, s53, s56
    s_mul_i32 s53, s53, 288
    v_add_u32 v6, s53, v6
    v_lshl_add_u32 v{T0+5}, v5, 3, v6        ; tile 8: + 8q (+256)
    v_lshl_add_u32 v{T0+4}, v5, 4, v6        ; + 16q
    v_add_u32 v{T0+4}, s52, v{T0+4}
    s_waitcnt vmcnt(10)
    s_barrier
    """)

    def wo(tile, ks):
        return WO + 18 * tile + 4 * ks

    for tile in range(5):
        for ks in range(5):
            if tile < 4:
                col = 64 * (tile >> 1) + 8 * (tile & 1)
                ra, rb = T0, T0 + 1
            else:
                col = 256
                ra, rb = T0 + 2, T0 + 3
            if ks < 4:
                o = 32 * ks * 288 + col
                A(f"ds_read_b64_tr_b16 {vr(wo(tile,ks),2)}, v{ra} offset:{o}")
                A(f"ds_read_b64_tr_b16 {vr(wo(tile,ks)+2,2)}, v{ra} offset:{o+8*288}")
            else:
                A(f"ds_read_b64_tr_b16 {vr(wo(tile,ks),2)}, v{rb} offset:{128*288+col}")
        A("s_waitcnt lgkmcnt(0)")
    A("s_mov_b32 s57, 0xffff0000")
    for ks in range(5):
        A(f"s_waitcnt vmcnt({2*(4-ks)})")
        for k in range(4 if ks < 4 else 2):
            a, s_ = ZA + 4 * ks + k, ZS + 4 * ks + k
            A(f"""
    v_lshlrev_b32 v{T0+6}, 16, v{a}
    v_lshlrev_b32 v{T0+7}, 16, v{s_}
    v_and_b32 v{T0+8}, s57, v{a}
    v_and_b32 v{T0+9}, s57, v{s_}
    v_mul_f32 v{T0+6}, v{T0+6}, v{T0+7}
    v_mul_f32 v{T0+8}, v{T0+8}, v{T0+9}
    v_cvt_pk_bf16_f32 v{a}, v{T0+6}, v{T0+8}
    """)
        A("s_nop 1")
        for tile in range(5):
            c = vr(ACC + 4 * tile) if ks > 0 else "0"
            if ks < 4:
                A(f"v_mfma_f32_16x16x32_bf16 {vr(ACC+4*tile)}, {vr(wo(tile,ks))}, {vr(ZA+4*ks)}, {c}")
            else:
                A(f"v_mfma_f32_16x16x16_bf16 {vr(ACC+4*tile)}, {vr(wo(tile,ks),2)}, {vr(ZA+4*ks,2)}, {c}")
    A("s_nop 7")
    for v in range(2):
        for u in range(2):
            a = ACC + 4 * (2 * v + u)
            A(f"v_cvt_pk_bf16_f32 v{8+4*v+2*u}, v{a}, v{a+1}")
            A(f"v_cvt_pk_bf16_f32 v{8+4*v+2*u+1}, v{a+2}, v{a+3}")
        A(f"buffer_store_dwordx4 {vr(8+4*v)}, v{T0+4}, s[12:15], 0 offen offset:{64*v}")
    A(f"""
    s_cmp_eq_u32 s51, 0
    s_cbranch_scc1 L_proj_end
    v_cvt_pk_bf16_f32 v16, v{ACC+16}, v{ACC+17}
    v_cvt_pk_bf16_f32 v17, v{ACC+18}, v{ACC+19}
    buffer_store_dwordx2 v[16:17], v{T0+5}, s[12:15], 0 offen offset:256
L_proj_end:
    s_endpgm
    """)
    return kd(name, 176, 80)


def main(out, stamps=False):
    A = Asm()
    A(f"""; wavenet gated dilated conv + projection, two launches
; @launch kernel=conv_kernel grid=(256,1,1) block=(320,1,1) lds={LDS1}
; @launch kernel=proj_kernel grid=(256,1,1) block=(256,1,1) lds={41*1024}
.amdgcn_target "amdgcn-amd-amdhsa--gfx950"
""")
    k1 = gen_conv(A, stamps)
    k2 = gen_proj(A)
    A(".fill 2048, 4, 0xbf800000")
    txt = A.text() + k1 + k2
    open(out, "w").write(txt)


if __name__ == "__main__":
    main(sys.argv[1], stamps=len(sys.argv) > 2 and sys.argv[2] == "stamps")
```

```python
import sys

NAME = "standalone__autoregressive_conv_wavenet__speech"
T, D, KT = 4000, 144, 15
XB = T * D * 2
WB = KT * D * 2 * D * 2
WOB = D * D * 2
RING = 32
XBASE = RING * 2048
NXI = 89
LDS1 = XBASE + NXI * 1024
INBOX = 18432
LOG2E = 1.4426950408889634


def f2u(f):
    import struct
    return struct.unpack("<I", struct.pack("<f", f))[0]


class Asm:
    def __init__(self):
        self.l = []

    def __call__(self, s):
        for x in s.strip("\n").split("\n"):
            self.l.append(x if x.strip().endswith(":") or x.startswith(".") or x.startswith(";") else "    " + x.strip())

    def text(self):
        return "\n".join(self.l) + "\n"


def vr(b, n=4):
    return f"v[{b}:{b+n-1}]"


def kd(name, vgpr, sgpr):
    return f"""
.section .rodata,"a"
.p2align 6
.amdhsa_kernel {name}
  .amdhsa_next_free_vgpr {vgpr}
  .amdhsa_next_free_sgpr {sgpr}
  .amdhsa_accum_offset {(vgpr+3)//4*4}
  .amdhsa_group_segment_fixed_size 0
  .amdhsa_kernarg_size 48
  .amdhsa_user_sgpr_count 2
  .amdhsa_user_sgpr_kernarg_segment_ptr 1
  .amdhsa_system_sgpr_workgroup_id_x 1
.end_amdhsa_kernel
"""


def wg_map(A, lab_exit):
    A(f"""
    s_cmp_ge_u32 s2, 256
    s_cbranch_scc1 {lab_exit}
    s_and_b32 s42, s2, 7
    s_lshr_b32 s43, s2, 3
    s_mul_i32 s44, s42, 27
    s_add_u32 s44, s44, s43
    s_mul_i32 s45, s42, 5
    s_add_u32 s45, s45, s43
    s_add_u32 s45, s45, {216 - 27}
    s_cmp_ge_u32 s43, 27
    s_cselect_b32 s44, s45, s44
    s_cmp_ge_u32 s44, 252
    s_cbranch_scc1 {lab_exit}
    s_mul_hi_u32 s40, s44, 0x1c71c71d ; /9
    s_mul_i32 s45, s40, 9
    s_sub_u32 s41, s44, s45
    """)


def steps_list():
    st = []
    for cc in range(4):
        for i in range(15):
            st.append(("c", cc, i))
    for m in range(8):
        st.append(("r", 4, 2 * m))
    return st


def w_soff(step, u):
    kind, cc, i = step
    if kind == "c":
        return (i * 144 + 32 * cc + 16 * u) * 576
    return ((i + u) * 144 + 128) * 576


def gen_conv(A, stamps=False):
    name = "conv_kernel"
    st = steps_list()
    NS = len(st)
    P = 6
    ACC = 8
    XW = 44
    WF = 136
    vX, vY, vY2, vW, vT, vSt = 148, 149, 150, 151, 152, 153
    vB, vG = 154, 155
    TMP = 156
    A(f"""
.text
.globl {name}
.p2align 8
.type {name},@function
{name}:
    s_load_dwordx4 s[4:7], s[0:1], 0
    s_load_dwordx2 s[8:9], s[0:1], 40
    """)
    if stamps:
        A("""
    s_load_dwordx2 s[70:71], s[0:1], 32
    s_memtime s[60:61]
    s_memrealtime s[72:73]
    """)
    wg_map(A, "L_conv_end")
    A(f"""
    s_getpc_b64 s[46:47]
    v_lshlrev_b32 v1, 7, v0
    v_cmp_gt_u32 vcc, 128, v0
    s_and_saveexec_b64 s[48:49], vcc
    s_cbranch_execz L_conv_nopf
    global_load_dword v7, v1, s[46:47]
L_conv_nopf:
    s_mov_b64 exec, s[48:49]
    v_lshrrev_b32 v1, 6, v0
    v_and_b32 v2, 63, v0              ; lane
    s_nop 0
    v_readfirstlane_b32 s3, v1
    s_cmp_ge_u32 s40, 14
    s_cselect_b32 s42, 1, 0           ; b
    s_mul_i32 s43, s42, 14
    s_sub_u32 s43, s40, s43           ; tt
    s_mul_i32 s44, s42, {XB}
    s_mul_i32 s45, s43, {288*288}
    s_sub_u32 s45, s45, {28*288}
    s_waitcnt lgkmcnt(0)
    s_add_u32 s12, s4, s44            ; x srd s[12:15]
    s_addc_u32 s13, s5, 0
    s_and_b32 s13, s13, 0xffff
    s_mov_b32 s14, {XB}
    s_mov_b32 s15, 0x20000
    s_mov_b32 s16, s6                 ; w srd s[16:19]
    s_and_b32 s17, s7, 0xffff
    s_mov_b32 s18, {WB}
    s_mov_b32 s19, 0x20000
    s_mov_b32 s20, s8
    s_and_b32 s21, s9, 0xffff
    s_mov_b32 s22, {28*9*INBOX}
    s_mov_b32 s23, 0x20000
    """)
    if stamps:
        A("s_memtime s[68:69]")
    A("""
    s_cmp_eq_u32 s3, 4
    s_cbranch_scc1 L_loader
    """)
    A(f"""
    s_lshl_b32 s46, s3, 10
    s_add_u32 s47, s46, s45
    v_lshlrev_b32 v3, 4, v2
    v_add_u32 v3, s47, v3
    s_add_u32 s46, s46, {XBASE}
    s_mov_b32 m0, s46
    s_nop 0
    """)
    nper = (NXI + 3) // 4
    for k in range(nper):
        if k == nper - 1 and NXI % 4:
            A(f"""
    s_cmp_ge_u32 s3, {NXI % 4}
    s_cbranch_scc1 L_xdone
    """)
        A(f"buffer_load_dwordx4 v3, s[12:15], 0 offen lds")
        if k < nper - 1:
            A(f"""
    s_add_u32 m0, m0, 4096
    v_add_u32 v3, 4096, v3
    """)
    A("L_xdone:")
    A("s_barrier")
    if stamps:
        A("s_memtime s[76:77]")
    A(f"""
    s_and_b32 s50, s3, 1              ; p
    s_lshr_b32 s51, s3, 1             ; nh
    v_and_b32 v4, 15, v2              ; r
    v_lshrrev_b32 v5, 4, v2           ; q
    v_mul_u32_u24 v{vX}, 5184, v4
    s_mul_i32 s52, s50, 288
    s_add_u32 s52, s52, {XBASE}
    v_add_u32 v{vX}, s52, v{vX}
    v_and_b32 v6, 1, v5
    v_lshlrev_b32 v6, 4, v6
    v_add3_u32 v{vY2}, v{vX}, v6, 64
    v_add_u32 v{vY2}, 192, v{vY2}      ; + 256 + 16*(q&1)
    v_lshrrev_b32 v6, 1, v5
    v_mul_u32_u24 v6, 576, v6
    v_sub_u32 v{vY}, v{vY2}, v6
    v_lshl_add_u32 v{vX}, v5, 4, v{vX}
    v_lshlrev_b32 v{vW}, 9, v5
    v_bfe_u32 v6, v2, 2, 2
    v_lshl_add_u32 v{vW}, v6, 6, v{vW}
    v_and_b32 v6, 1, v5
    v_xor_b32 v6, s51, v6
    v_lshl_add_u32 v{vW}, v6, 5, v{vW}
    v_and_b32 v6, 3, v2
    v_lshl_add_u32 v{vW}, v6, 3, v{vW}
    v_and_b32 v6, 31, v2
    v_lshlrev_b32 v{vSt}, 4, v6
    v_lshrrev_b32 v6, 5, v2
    v_mul_u32_u24 v6, {INBOX}, v6
    v_add_u32 v{vSt}, v{vSt}, v6
    s_lshl_b32 s53, s41, 1
    s_add_u32 s53, s53, s51           ; ntile
    s_mul_i32 s54, s40, {9*INBOX}
    s_mul_i32 s55, s50, 9216
    s_add_u32 s54, s54, s55
    s_lshl_b32 s55, s53, 9
    s_add_u32 s54, s54, s55
    s_cmp_lt_u32 s53, 9
    s_mov_b32 s56, {f2u(-LOG2E)}
    s_cselect_b32 s56, {f2u(-2*LOG2E)}, s56
    s_cselect_b32 s57, 2.0, 1.0
    s_cselect_b32 s58, -1.0, 0
    v_mov_b32 v{vB}, s57
    v_mov_b32 v{vG}, s58
    s_waitcnt vmcnt(0)
    s_barrier
    """)
    if stamps:
        A("s_memtime s[62:63]\ns_waitcnt lgkmcnt(0)")

    def xslot(e):
        return XW + 4 * (8 - e)

    def xread(kind, cc, e):
        off = (28 + 2 * e) * 288
        if kind == "c":
            return f"ds_read_b128 {vr(xslot(e))}, v{vX} offset:{off + 64*cc}"
        return f"ds_read_b128 {vr(xslot(e))}, v{vY2 if e == -14 else vY} offset:{off}"

    def wread(s):
        b = WF + 4 * (s % 3)
        o = (s % RING) * 2048
        return [f"ds_read_b64_tr_b16 {vr(b,2)}, v{vW} offset:{o}",
                f"ds_read_b64_tr_b16 {vr(b+2,2)}, v{vW} offset:{o+256}"]

    reads = [[] for _ in range(NS)]
    pre = []
    need = [set() for _ in range(NS)]
    for s, (kind, cc, i) in enumerate(st):
        need[s].add(("w", s))
        for j in range(9):
            need[s].add(("x", cc, j - i))
    for s in range(NS):
        tgt = pre if s < 2 else reads[s - 2]
        for k, tx in enumerate(wread(s)):
            tgt.append((("w", s), tx))
    for cc in range(5):
        kind = "c" if cc < 4 else "r"
        base = 15 * cc
        for e in range(8, -15, -1):
            if e >= 0:
                at = base - 15 + 5 + (8 - e)
            elif kind == "c":
                at = base + (-e) - 2
            else:
                first = base + (-e + 1) // 2
                at = max(first - 2, base - 1 if e == -1 else base)
            tx = xread(kind, cc, e)
            if cc == 0 and at < 0 or (cc == 0 and e >= 0):
                pre.insert(0 if e >= 0 else len(pre), (("x", cc, e), tx))
            elif kind == "r" and e == -2:
                reads[at].insert(0, (("x", cc, e), tx))
            else:
                reads[at].append((("x", cc, e), tx))
    L0 = P
    bar_at = {}
    L = L0
    bl = []
    while L < NS:
        bar_at[L - 2] = True
        bl.append((L - 2, min(L + P, NS)))
        L += P
    queue = []
    for tag, tx in pre:
        A(tx)
        queue.append(tag)
    for s, (kind, cc, i) in enumerate(st):
        idx = max([k for k, tg in enumerate(queue) if tg in need[s]], default=-1)
        rem = len(queue) - 1 - idx
        if idx >= 0:
            assert rem <= 15
            A(f"s_waitcnt lgkmcnt({rem})")
            queue = queue[idx + 1:]
        if s in bar_at:
            A("s_barrier")
        rd = list(reads[s])
        for n, j in enumerate(range(8, -1, -1)):
            c = vr(ACC + 4 * j) if s > 0 else "0"
            A(f"v_mfma_f32_16x16x32_bf16 {vr(ACC+4*j)}, {vr(WF+4*(s%3))}, {vr(xslot(j-i))}, {c}")
            if rd and n >= 0:
                tag, tx = rd.pop(0)
                A(tx)
                queue.append(tag)
        assert not rd
    if stamps:
        A("s_memtime s[64:65]")
    A("s_nop 7")

    def act(j, dst):
        a = ACC + 4 * j
        for k in range(4):
            A(f"v_mul_f32 v{a+k}, s56, v{a+k}")
        for k in range(4):
            A(f"v_exp_f32 v{a+k}, v{a+k}")
        for k in range(4):
            A(f"v_add_f32 v{a+k}, 1.0, v{a+k}")
        for k in range(4):
            A(f"v_rcp_f32 v{a+k}, v{a+k}")
        for k in range(4):
            A(f"v_fma_f32 v{a+k}, v{a+k}, v{vB}, v{vG}")
        A(f"v_cvt_pk_bf16_f32 v{dst}, v{a}, v{a+1}")
        A(f"v_cvt_pk_bf16_f32 v{dst+1}, v{a+2}, v{a+3}")

    for pr, j in enumerate([8, 6, 4, 2, 0]):
        t = TMP + 4 * (pr % 4)
        if j == 8:
            act(8, t)
            A(f"""
    v_mov_b32 v{t+2}, v{t}
    v_mov_b32 v{t+3}, v{t+1}
    """)
        else:
            act(j, t)
            act(j + 1, t + 2)
        A(f"""
    s_add_u32 s55, s54, {j*INBOX}
    s_nop 0
    v_permlane32_swap_b32 v{t}, v{t+2}
    v_permlane32_swap_b32 v{t+1}, v{t+3}
    """)
        if j == 8:
            A("s_mov_b32 exec_hi, 0")
        A(f"buffer_store_dwordx4 {vr(t)}, v{vSt}, s[20:23], s55 offen")
        if j == 8:
            A("s_mov_b32 exec_hi, -1")
    if stamps:
        A(f"""
    s_waitcnt vmcnt(0)
    s_memtime s[66:67]
    s_memrealtime s[74:75]
    s_waitcnt lgkmcnt(0)
    s_cmp_eq_u32 s3, 0
    s_cbranch_scc0 L_conv_end
    s_sub_u32 s62, s62, s60
    s_sub_u32 s64, s64, s60
    s_sub_u32 s66, s66, s60
    s_sub_u32 s68, s68, s60
    s_sub_u32 s76, s76, s60
    v_mov_b32 v8, s68
    v_mov_b32 v9, s76
    v_mov_b32 v10, s62
    v_mov_b32 v11, s64
    v_mov_b32 v12, s66
    v_mov_b32 v13, s72
    v_mov_b32 v14, s74
    v_mov_b32 v15, s2
    s_mov_b32 s22, 0x10000000
    s_lshl_b32 s55, s2, 5
    s_add_u32 s55, s55, 0x8000000
    v_mov_b32 v16, 0
    s_mov_b64 exec, 1
    buffer_store_dwordx4 v[8:11], v16, s[20:23], s55 offen
    buffer_store_dwordx4 v[12:15], v16, s[20:23], s55 offen offset:16
    """)
    A("s_endpgm")
    A(f"""
L_loader:
    v_lshrrev_b32 v3, 2, v2
    v_mul_u32_u24 v3, 576, v3
    v_lshrrev_b32 v4, 5, v2
    v_lshlrev_b32 v4, 1, v4
    v_and_b32 v5, 3, v2
    v_xor_b32 v4, v4, v5
    v_lshl_add_u32 v3, v4, 4, v3
    s_lshl_b32 s46, s41, 6
    """)
    issued = 0

    def issue(upto):
        nonlocal issued
        while issued < upto:
            for u in range(2):
                A(f"""
    s_mov_b32 m0, {(issued % RING)*2048 + 1024*u}
    s_add_u32 s47, s46, {w_soff(st[issued], u)}
    buffer_load_dwordx4 v3, s[16:19], s47 offen lds
    """)
            issued += 1

    issue(2)
    A("s_barrier")
    DEPTH = 26
    issue(min(DEPTH, NS))
    A(f"s_waitcnt vmcnt({2*(issued - L0)})")
    A("s_barrier")
    prev_c = -1
    for (c, Lk) in bl:
        issue(min(prev_c + RING + 1, NS, Lk + DEPTH - P))
        A(f"s_waitcnt vmcnt({2*(issued - Lk)})")
        A("s_barrier")
        prev_c = c
    A("""
L_conv_end:
    s_endpgm
    """)
    return kd(name, 176, 80)


def gen_proj(A):
    name = "proj_kernel"
    ZA = 8
    ZS = 28
    WO = 48
    ACC = 140
    T0 = 160
    A(f"""
.text
.globl {name}
.p2align 8
.type {name},@function
{name}:
    s_load_dwordx4 s[4:7], s[0:1], 16
    s_load_dwordx2 s[8:9], s[0:1], 40
    """)
    wg_map(A, "L_proj_end")
    A(f"""
    v_lshrrev_b32 v1, 6, v0
    v_and_b32 v2, 63, v0
    s_nop 0
    v_readfirstlane_b32 s3, v1
    s_cmp_ge_u32 s40, 14
    s_cselect_b32 s42, 1, 0           ; b
    s_mul_i32 s43, s42, 14
    s_sub_u32 s43, s40, s43           ; tt
    s_mul_i32 s44, s42, {XB}
    s_and_b32 s50, s3, 1              ; p
    s_lshr_b32 s51, s3, 1             ; dh
    s_mul_i32 s54, s40, 9
    s_add_u32 s54, s54, s41
    s_mul_i32 s54, s54, {INBOX}
    s_mul_i32 s55, s50, 9216
    s_add_u32 s54, s54, s55           ; inbox + p*9216
    s_add_u32 s55, s54, 4608
    v_lshlrev_b32 v3, 4, v2
    v_and_b32 v4, 31, v2
    v_lshlrev_b32 v4, 4, v4
    v_lshrrev_b32 v5, 5, v2
    v_lshl_add_u32 v4, v5, 3, v4
    v_add_u32 v4, 4096, v4
    s_waitcnt lgkmcnt(0)
    s_mov_b32 s16, s4                 ; w_o srd
    s_and_b32 s17, s5, 0xffff
    s_mov_b32 s18, {WOB}
    s_mov_b32 s19, 0x20000
    s_add_u32 s12, s6, s44
    s_addc_u32 s13, s7, 0
    s_and_b32 s13, s13, 0xffff
    s_mov_b32 s14, {XB}
    s_mov_b32 s15, 0x20000
    s_mov_b32 s20, s8
    s_and_b32 s21, s9, 0xffff
    s_mov_b32 s22, {28*9*INBOX}
    s_mov_b32 s23, 0x20000
    s_lshl_b32 s46, s3, 10
    s_mov_b32 m0, s46
    s_nop 0
    """)
    for k in range(11):
        if k == 10:
            A("s_cmp_ge_u32 s3, 1\ns_cbranch_scc1 L_wodone")
        A("buffer_load_dwordx4 v3, s[16:19], s46 offen lds")
        if k < 10:
            A("s_add_u32 s46, s46, 4096\ns_mov_b32 m0, s46\ns_nop 0")
    A("L_wodone:")
    for ks in range(4):
        A(f"buffer_load_dwordx4 {vr(ZA+4*ks)}, v3, s[20:23], s54 offen offset:{1024*ks}")
        A(f"buffer_load_dwordx4 {vr(ZS+4*ks)}, v3, s[20:23], s55 offen offset:{1024*ks}")
    A(f"buffer_load_dwordx2 {vr(ZA+16,2)}, v4, s[20:23], s54 offen")
    A(f"buffer_load_dwordx2 {vr(ZS+16,2)}, v4, s[20:23], s55 offen")
    A(f"""
    v_lshrrev_b32 v5, 4, v2           ; q
    v_and_b32 v6, 1, v5
    v_lshlrev_b32 v6, 2, v6           ; 4*(q&1)
    v_bfe_u32 v7, v2, 2, 2
    v_add_u32 v6, v6, v7              ; 4*(q&1) + r'
    v_lshrrev_b32 v7, 1, v5           ; q>>1
    v_lshl_add_u32 v{T0}, v7, 4, v6
    v_lshl_add_u32 v{T0+1}, v7, 3, v6
    v_mul_u32_u24 v{T0}, 288, v{T0}
    v_mul_u32_u24 v{T0+1}, 288, v{T0+1}
    v_and_b32 v7, 3, v2               ; c
    v_lshl_add_u32 v{T0+2}, v7, 3, v{T0}     ; tile 8: 8c
    v_lshl_add_u32 v{T0+3}, v7, 3, v{T0+1}
    v_lshl_add_u32 v{T0}, v7, 4, v{T0}
    v_lshl_add_u32 v{T0+1}, v7, 4, v{T0+1}
    s_lshl_b32 s52, s51, 7
    v_add_u32 v{T0}, s52, v{T0}
    v_add_u32 v{T0+1}, s52, v{T0+1}
    v_and_b32 v6, 15, v2
    v_mul_u32_u24 v6, 5184, v6
    s_mul_i32 s53, s43, 288
    s_add_u32 s53, s53, s50
    s_lshl_b32 s56, s41, 1
    s_add_u32 s53, s53, s56
    s_mul_i32 s53, s53, 288
    v_add_u32 v6, s53, v6
    v_lshl_add_u32 v{T0+5}, v5, 3, v6        ; tile 8: + 8q (+256)
    v_lshl_add_u32 v{T0+4}, v5, 4, v6        ; + 16q
    v_add_u32 v{T0+4}, s52, v{T0+4}
    s_waitcnt vmcnt(10)
    s_barrier
    """)

    def wo(tile, ks):
        return WO + 18 * tile + 4 * ks

    for tile in range(5):
        for ks in range(5):
            if tile < 4:
                col = 64 * (tile >> 1) + 8 * (tile & 1)
                ra, rb = T0, T0 + 1
            else:
                col = 256
                ra, rb = T0 + 2, T0 + 3
            if ks < 4:
                o = 32 * ks * 288 + col
                A(f"ds_read_b64_tr_b16 {vr(wo(tile,ks),2)}, v{ra} offset:{o}")
                A(f"ds_read_b64_tr_b16 {vr(wo(tile,ks)+2,2)}, v{ra} offset:{o+8*288}")
            else:
                A(f"ds_read_b64_tr_b16 {vr(wo(tile,ks),2)}, v{rb} offset:{128*288+col}")
        A("s_waitcnt lgkmcnt(0)")
    A("s_mov_b32 s57, 0xffff0000")
    for ks in range(5):
        A(f"s_waitcnt vmcnt({2*(4-ks)})")
        for k in range(4 if ks < 4 else 2):
            a, s_ = ZA + 4 * ks + k, ZS + 4 * ks + k
            A(f"""
    v_lshlrev_b32 v{T0+6}, 16, v{a}
    v_lshlrev_b32 v{T0+7}, 16, v{s_}
    v_and_b32 v{T0+8}, s57, v{a}
    v_and_b32 v{T0+9}, s57, v{s_}
    v_mul_f32 v{T0+6}, v{T0+6}, v{T0+7}
    v_mul_f32 v{T0+8}, v{T0+8}, v{T0+9}
    v_cvt_pk_bf16_f32 v{a}, v{T0+6}, v{T0+8}
    """)
        A("s_nop 1")
        for tile in range(5):
            c = vr(ACC + 4 * tile) if ks > 0 else "0"
            if ks < 4:
                A(f"v_mfma_f32_16x16x32_bf16 {vr(ACC+4*tile)}, {vr(wo(tile,ks))}, {vr(ZA+4*ks)}, {c}")
            else:
                A(f"v_mfma_f32_16x16x16_bf16 {vr(ACC+4*tile)}, {vr(wo(tile,ks),2)}, {vr(ZA+4*ks,2)}, {c}")
    A("s_nop 7")
    for v in range(2):
        for u in range(2):
            a = ACC + 4 * (2 * v + u)
            A(f"v_cvt_pk_bf16_f32 v{8+4*v+2*u}, v{a}, v{a+1}")
            A(f"v_cvt_pk_bf16_f32 v{8+4*v+2*u+1}, v{a+2}, v{a+3}")
        A(f"buffer_store_dwordx4 {vr(8+4*v)}, v{T0+4}, s[12:15], 0 offen offset:{64*v}")
    A(f"""
    s_cmp_eq_u32 s51, 0
    s_cbranch_scc1 L_proj_end
    v_cvt_pk_bf16_f32 v16, v{ACC+16}, v{ACC+17}
    v_cvt_pk_bf16_f32 v17, v{ACC+18}, v{ACC+19}
    buffer_store_dwordx2 v[16:17], v{T0+5}, s[12:15], 0 offen offset:256
L_proj_end:
    s_endpgm
    """)
    return kd(name, 176, 80)


def main(out, stamps=False):
    A = Asm()
    A(f"""; wavenet gated dilated conv + projection, two launches
; @launch kernel=conv_kernel grid=(256,1,1) block=(320,1,1) lds={LDS1}
; @launch kernel=proj_kernel grid=(256,1,1) block=(256,1,1) lds={41*1024}
.amdgcn_target "amdgcn-amd-amdhsa--gfx950"
""")
    k1 = gen_conv(A, stamps)
    k2 = gen_proj(A)
    A(".fill 2048, 4, 0xbf800000")
    txt = A.text() + k1 + k2
    open(out, "w").write(txt)


if __name__ == "__main__":
    main(sys.argv[1], stamps=len(sys.argv) > 2 and sys.argv[2] == "stamps")
```

```python
import sys, struct

NAME = "standalone__autoregressive_conv_wavenet__speech_kernel"
T, D, KT = 4000, 144, 15
XB = T * D * 2
WB = KT * D * 2 * D * 2
WOB = D * D * 2
INBOX = 18432
LOG2E = 1.4426950408889634
SENT = 0x44004400


def f2u(f):
    return struct.unpack("<I", struct.pack("<f", f))[0]


class Asm:
    def __init__(self):
        self.l = []

    def __call__(self, s):
        for x in s.strip("\n").split("\n"):
            x = x.strip()
            if not x:
                continue
            self.l.append(x if x.endswith(":") or x.startswith(".") or x.startswith(";") else "    " + x)

    def text(self):
        return "\n".join(self.l) + "\n"


def vr(b, n=4):
    return f"v[{b}:{b+n-1}]"


class Cfg:
    ring = 32
    lead = 12
    phase = 54
    first_phase = 18
    depth = 14
    swz = True
    burst = 36
    coop = False
    slope = 7
    wtouch = True
    early = 2
    delay = 0
    amp = -1
    pre_w = 2
    tilemajor = True
    stamps = False
    stflag = "sc1"
    outflag = ""
    prio = 0


def build(cfg):
    A = Asm()
    RING = cfg.ring
    XBASE = RING * 2048
    NXI = 89
    LDS = XBASE + NXI * 1024
    WO_BASE = 0 if cfg.tilemajor else 8192
    ZX_BASE = XBASE

    order = [("c", 0), ("c", 1), ("r", 4), ("c", 2), ("c", 3)] if cfg.tilemajor else \
            [("c", 0), ("c", 1), ("c", 2), ("c", 3), ("r", 4)]
    st = []
    for kind, cc in order:
        for i in (range(15) if kind == "c" else range(0, 15, 2)):
            st.append((kind, cc, i))
    NS = len(st)
    ops = []
    for s, (kind, cc, i) in enumerate(st):
        if cfg.tilemajor and cc == 3:
            continue
        for j in range(8, -1, -1):
            ops.append((j, s, (cc, j - i)))
    tm_start = len(ops)
    if cfg.tilemajor:
        s0 = NS - 15
        for j in range(8, -1, -1):
            for i in range(15):
                ops.append((j, s0 + i, (3, j - i)))
    NO = len(ops)

    def w_soff(step, u):
        kind, cc, i = step
        if kind == "c":
            return (i * 144 + 32 * cc + 16 * u) * 576
        return ((i + u) * 144 + 128) * 576

    ACC = 8
    vX, vY, vY2, vW, vSt, vB, vG, vL, vL2, vZ = 44, 45, 46, 47, 48, 49, 50, 51, 52, 53
    vOa, vOb, vOc, vOd, vOut, vOut8 = 54, 55, 56, 57, 58, 59
    vSt8 = 7
    TMP = 60
    vXS = 76
    POOL = 84
    first, last = {}, {}
    for n, (j, s, xt) in enumerate(ops):
        for tag in (("w", s), ("x",) + xt):
            first.setdefault(tag, n)
            last[tag] = n
    cap = [1] * NO
    if cfg.tilemajor:
        for g in range(tm_start - cfg.burst, tm_start + 15):
            cap[g] = 2
        for g in range(tm_start + 15, NO):
            cap[g] = 0
    load = [0] * NO
    place = {}
    for tag in sorted(first, key=lambda t: -first[t]):
        nrd = 2 if tag[0] == "w" else 1
        gs = []
        g = first[tag] - cfg.lead
        for k in range(nrd):
            while g >= 0 and load[g] >= cap[g]:
                g -= 1
            if g >= 0:
                load[g] += 1
            gs.append(max(g, -1))
        place[tag] = sorted(gs)
    slot = {}
    nslots = 0
    busy = []
    for tag in sorted(place, key=lambda t: (place[t][0], first[t])):
        g = place[tag][0]
        for k in range(nslots):
            if busy[k] <= g:
                break
        else:
            k = nslots
            nslots += 1
            busy.append(0)
        busy[k] = last[tag]
        slot[tag] = POOL + 4 * k
    nv = max(POOL + 4 * nslots, POOL + 132)
    assert nv <= 256, nv

    def rd_text(tag):
        b = slot[tag]
        if tag[0] == "w":
            o = (tag[1] % RING) * 2048
            return [f"ds_read_b64_tr_b16 {vr(b,2)}, v{vW} offset:{o}",
                    f"ds_read_b64_tr_b16 {vr(b+2,2)}, v{vW} offset:{o+256}"]
        _, cc, e = tag
        off = (28 + 2 * e) * 288
        if cc < 4:
            ra = vXS + (14 + e) % 8 if cfg.swz else vX
            return [f"ds_read_b128 {vr(b)}, v{ra} offset:{off + 64*cc}"]
        return [f"ds_read_b128 {vr(b)}, v{vY2 if e == -14 else vY} offset:{off}"]

    gap_reads = {g: [] for g in range(-1, NO)}
    for tag in sorted(place, key=lambda t: (first[t], t[0] == "w")):
        for g, tx in zip(place[tag], rd_text(tag)):
            gap_reads[g].append((tag, tx))
    last_w_gap = max(place[t][-1] for t in place if t[0] == "w")
    bars = []
    n = cfg.first_phase
    while n <= last_w_gap:
        bars.append(n)
        n += cfg.phase
    if cfg.tilemajor:
        bar_free = tm_start + 15
    else:
        bar_free = min(n for n in range(NO) if ops[n][1] == 58)
        bars = [b for b in bars if abs(b - bar_free) > 9]
    bars = sorted(set(bars + [bar_free]))
    first_store_op = tm_start + 15 if cfg.tilemajor else NO

    edges = [-1] + bars + [NO]
    need = []
    for k in range(len(edges) - 1):
        m = [t[1] for t in place if t[0] == "w" and place[t][0] < edges[k + 1]]
        need.append(max(m) + 1)

    S = cfg.stamps
    A(f"""; wavenet gated dilated conv + projection, fused
; @launch grid=(256,1,1) block=(384,1,1) lds={LDS}
.amdgcn_target "amdgcn-amd-amdhsa--gfx950"
.text
.globl {NAME}
.p2align 8
.type {NAME},@function
{NAME}:
    s_load_dwordx8 s[4:11], s[0:1], 0
    s_load_dwordx4 s[24:27], s[0:1], 32
    """)
    if S:
        A("s_memtime s[80:81]\ns_memrealtime s[94:95]")
    A(f"""
    s_cmp_ge_u32 s2, 256
    s_cbranch_scc1 L_end
    s_and_b32 s42, s2, 7
    s_lshr_b32 s43, s2, 3
    s_mul_i32 s44, s42, 27
    s_add_u32 s44, s44, s43
    s_mul_i32 s45, s42, 5
    s_add_u32 s45, s45, s43
    s_add_u32 s45, s45, {216 - 27}
    s_cmp_ge_u32 s43, 27
    s_cselect_b32 s44, s45, s44
    s_cmp_ge_u32 s44, 252
    s_cbranch_scc1 L_end
    s_mul_hi_u32 s40, s44, 0x1c71c71d ; group
    s_mul_i32 s45, s40, 9
    s_sub_u32 s41, s44, s45           ; member
    s_getpc_b64 s[46:47]
L_pc:
    v_lshlrev_b32 v1, 7, v0
    v_cmp_gt_u32 vcc, (L_textend-L_pc)/128, v0
    s_and_saveexec_b64 s[48:49], vcc
    s_cbranch_execz L_nopf
    global_load_dword v7, v1, s[46:47]
L_nopf:
    s_mov_b64 exec, s[48:49]
    v_lshrrev_b32 v1, 6, v0
    v_and_b32 v2, 63, v0              ; lane
    s_nop 0
    v_readfirstlane_b32 s3, v1
    s_cmp_ge_u32 s40, 14
    s_cselect_b32 s42, 1, 0           ; batch
    s_mul_i32 s43, s42, 14
    s_sub_u32 s43, s40, s43
    s_mul_i32 s39, s42, {XB}
    s_mul_i32 s45, s43, {288*288}
    s_sub_u32 s45, s45, {28*288}
    s_mul_i32 s38, s44, {INBOX}
    s_min_u32 s46, s3, 4
    s_cmp_eq_u32 s3, 5
    s_cselect_b32 s46, 8, s46
    s_mov_b32 s47, {(2**32 + 17)//18}
    """)
    for c in range(2):
        A(f"""
    s_add_u32 s48, s46, {4*c}
    s_lshl_b32 s48, s48, 6
    v_add_u32 v3, s48, v2
    """)
        if cfg.swz:
            A(f"""
    v_mul_hi_u32 v4, s47, v3          ; row
    v_mul_u32_u24 v5, 18, v4
    v_sub_u32 v5, v3, v5
    v_lshrrev_b32 v4, 2, v4
    v_and_b32 v4, 2, v4
    v_xor_b32 v4, v4, v5
    v_cmp_gt_u32 vcc, 16, v5
    v_sub_u32 v3, v3, v5
    s_nop 0
    v_cndmask_b32 v4, v5, v4, vcc
    v_add_u32 v3, v3, v4
    """)
        A(f"v_lshl_add_u32 v{8+c}, v3, 4, s45")
    A(f"""
    s_lshl_b32 s46, s46, 10
    s_add_u32 s46, s46, {XBASE}
    s_waitcnt lgkmcnt(0)
    s_add_u32 s12, s4, s39            ; x srd s[12:15]
    s_addc_u32 s13, s5, 0
    s_and_b32 s13, s13, 0xffff
    s_mov_b32 s14, {XB}
    s_mov_b32 s15, 0x20000
    s_mov_b32 s16, s6                 ; w srd s[16:19]
    s_and_b32 s17, s7, 0xffff
    s_mov_b32 s18, {WB}
    s_mov_b32 s19, 0x20000
    s_mov_b32 s20, s26
    s_and_b32 s21, s27, 0xffff
    s_mov_b32 s22, {252*INBOX}
    s_mov_b32 s23, 0x20000
    s_add_u32 s28, s10, s39
    s_addc_u32 s29, s11, 0
    s_and_b32 s29, s29, 0xffff
    s_mov_b32 s30, {XB}
    s_mov_b32 s31, 0x20000
    s_mov_b32 s32, s8                 ; w_o srd s[32:35]
    s_and_b32 s33, s9, 0xffff
    s_mov_b32 s34, {WOB}
    s_mov_b32 s35, 0x20000
    s_mov_b32 s60, s24
    s_and_b32 s61, s25, 0xffff
    s_mov_b32 s62, 256
    s_mov_b32 s63, 0x20000
    """)
    if S:
        A("s_memtime s[82:83]")
    A(f"""
    s_cmp_eq_u32 s3, 4
    s_cbranch_scc1 L_loader
    """)

    def xdma(nclass, first):
        for k in range(10):
            for c in range(nclass):
                if k == 9 and first + 4 * c == 8:
                    continue
                A(f"s_add_u32 m0, s46, {9216*k + 4096*c}")
                if k > 0:
                    A(f"v_add_u32 v{8+c}, 9216, v{8+c}")
                else:
                    A("s_nop 0")
                A(f"buffer_load_dwordx4 v{8+c}, s[12:15], 0 offen lds")

    if cfg.coop:
        A(f"""
    s_mul_i32 s47, s41, {80*128}
    s_add_u32 s47, s47, s45
    v_lshlrev_b32 v4, 7, v0
    v_add_u32 v4, s47, v4
    v_cmp_gt_u32 vcc, 80, v0
    s_and_saveexec_b64 s[48:49], vcc
    s_cbranch_execz L_nocoop
    buffer_load_dword v7, v4, s[12:15], 0 offen
L_nocoop:
    s_mov_b64 exec, s[48:49]
    """)
    A("""
    s_cmp_eq_u32 s3, 5
    s_cbranch_scc1 L_helper
    """)
    xdma(2, 0)
    A("s_barrier")
    A(f"""
    s_and_b32 s50, s3, 1              ; p
    s_lshr_b32 s51, s3, 1
    v_and_b32 v4, 15, v2              ; r
    v_lshrrev_b32 v5, 4, v2           ; q
    v_mul_u32_u24 v1, 5184, v4
    s_mul_i32 s52, s50, 288
    s_add_u32 s52, s52, {XBASE}
    v_add_u32 v{vX}, s52, v1
    v_and_b32 v6, 1, v5
    v_lshlrev_b32 v6, 4, v6
    v_add_u32 v6, 256, v6
    v_add_u32 v{vY2}, v{vX}, v6
    v_lshrrev_b32 v6, 1, v5
    v_mul_u32_u24 v6, 576, v6
    v_sub_u32 v{vY}, v{vY2}, v6
    """)
    if cfg.swz:
        A(f"v_mul_u32_u24 v3, 18, v4\nv_add_u32 v3, s50, v3")
        for m in range(8):
            A(f"""
    v_add_u32 v6, {2*m}, v3
    v_lshrrev_b32 v6, 2, v6
    v_and_b32 v6, 2, v6
    v_xor_b32 v6, v6, v5
    v_lshl_add_u32 v{vXS+m}, v6, 4, v{vX}
    """)
    A(f"""
    v_lshl_add_u32 v{vX}, v5, 4, v{vX}
    v_lshlrev_b32 v{vW}, 9, v5
    v_bfe_u32 v6, v2, 2, 2
    v_lshl_add_u32 v{vW}, v6, 6, v{vW}
    v_and_b32 v6, 1, v5
    v_xor_b32 v6, s51, v6
    v_lshl_add_u32 v{vW}, v6, 5, v{vW}
    v_and_b32 v6, 3, v2
    v_lshl_add_u32 v{vW}, v6, 3, v{vW}
    v_and_b32 v6, 31, v2
    v_lshlrev_b32 v{vL2}, 4, v6
    v_lshrrev_b32 v6, 5, v2
    v_mul_u32_u24 v3, {INBOX}, v6
    v_add_u32 v{vSt}, v{vL2}, v3
    v_lshl_add_u32 v{vL2}, v6, 3, v{vL2}
    v_lshlrev_b32 v{vL}, 4, v2
    s_lshl_b32 s53, s41, 1
    s_add_u32 s53, s53, s51
    s_mul_i32 s54, s40, {9*INBOX}
    s_mul_i32 s55, s50, 9216
    s_add_u32 s54, s54, s55
    s_add_u32 s38, s38, s55
    s_lshl_b32 s55, s53, 9
    s_add_u32 s72, s54, s55
    s_add_u32 s73, s72, {2*INBOX}
    s_add_u32 s74, s72, {4*INBOX}
    s_add_u32 s75, s72, {6*INBOX}
    s_add_u32 s76, s72, {8*INBOX}
    s_cmp_lt_u32 s53, 9
    s_mov_b32 s56, {f2u(-LOG2E)}
    s_cselect_b32 s56, {f2u(-2*LOG2E)}, s56
    s_cselect_b32 s57, 2.0, 1.0
    s_cselect_b32 s58, -1.0, 0
    v_mov_b32 v{vB}, s57
    v_mov_b32 v{vG}, s58
    v_and_b32 v6, 1, v5
    v_lshlrev_b32 v6, 2, v6
    v_bfe_u32 v3, v2, 2, 2
    v_add_u32 v6, v6, v3              ; 4*(q&1) + r'
    v_lshrrev_b32 v3, 1, v5
    v_lshl_add_u32 v{vOa}, v3, 4, v6
    v_lshl_add_u32 v{vOb}, v3, 3, v6
    v_mul_u32_u24 v{vOa}, 288, v{vOa}
    v_mul_u32_u24 v{vOb}, 288, v{vOb}
    v_and_b32 v3, 3, v2
    v_lshl_add_u32 v{vOc}, v3, 3, v{vOa}
    v_lshl_add_u32 v{vOd}, v3, 3, v{vOb}
    v_lshl_add_u32 v{vOa}, v3, 4, v{vOa}
    v_lshl_add_u32 v{vOb}, v3, 4, v{vOb}
    s_lshl_b32 s52, s51, 7
    v_add_u32 v{vOa}, s52, v{vOa}
    v_add_u32 v{vOb}, s52, v{vOb}
    s_mul_i32 s53, s43, 288
    s_add_u32 s53, s53, s50
    s_lshl_b32 s55, s41, 1
    s_add_u32 s53, s53, s55
    s_mul_i32 s53, s53, 288
    v_add_u32 v6, s53, v1
    v_lshl_add_u32 v{vOut8}, v5, 3, v6
    v_lshl_add_u32 v{vOut}, v5, 4, v6
    v_add_u32 v{vOut}, s52, v{vOut}
    s_mul_i32 s55, s50, 5120
    s_add_u32 s55, s55, {ZX_BASE}
    v_add_u32 v{vZ}, s55, v{vL}
    """)
    if cfg.prio:
        A(f"s_setprio {cfg.prio}")
    A(f"""
    s_waitcnt vmcnt(0)
    v_lshrrev_b32 v6, 5, v2
    v_lshlrev_b32 v6, 31, v6
    v_or_b32 v{vSt8}, v{vSt}, v6
    s_barrier
    """)
    if S:
        A("s_memrealtime s[66:67]")
        A("s_memtime s[84:85]\ns_waitcnt lgkmcnt(0)")

    def act_instrs(j, dst):
        a = ACC + 4 * j
        o = []
        o += [f"v_mul_f32 v{a+k}, s56, v{a+k}" for k in range(4)]
        o += [f"v_exp_f32 v{a+k}, v{a+k}" for k in range(4)]
        o += [f"v_add_f32 v{a+k}, 1.0, v{a+k}" for k in range(4)]
        o += [f"v_rcp_f32 v{a+k}, v{a+k}" for k in range(4)]
        o += [f"v_fma_f32 v{a+k}, v{a+k}, v{vB}, v{vG}" for k in range(4)]
        o += [f"v_cvt_pk_f16_f32 v{dst}, v{a}, v{a+1}", f"v_cvt_pk_f16_f32 v{dst+1}, v{a+2}, v{a+3}"]
        return o

    def tile_tail(j):
        t = TMP + 4 * ((j // 2) % 4)
        if j == 8:
            o = act_instrs(8, t)
            o += [f"v_mov_b32 v{t+2}, v{t}", f"v_mov_b32 v{t+3}, v{t+1}"]
        elif j % 2:
            return act_instrs(j, t + 2)
        else:
            o = act_instrs(j, t)
        o += ["|", f"v_permlane32_swap_b32 v{t}, v{t+2}", f"v_permlane32_swap_b32 v{t+1}, v{t+3}"]
        o.append(f"buffer_store_dwordx4 {vr(t)}, v{vSt8 if j == 8 else vSt}, s[20:23], s{72 + j//2} offen {cfg.stflag}")
        return o

    queue = []
    done = set()
    free_at = {}
    for tag, tx in gap_reads[-1]:
        A(tx)
        queue.append(tag)
    assert len(queue) <= 15, len(queue)
    pend = []
    lastx = ""
    seen = set()
    for n, (j, s, xt) in enumerate(ops):
        needs = {("w", s), ("x",) + xt} - done
        if n == bar_free:
            needs |= {t for t in queue if t[0] == "w" and (cfg.tilemajor or t[1] <= 58)}
        if needs:
            idx = max(k for k, tg in enumerate(queue) if tg in needs)
            idx = max(idx, len(queue) - 1 - 15)
            rem = len(queue) - 1 - idx
            A(f"s_waitcnt lgkmcnt({rem})")
            done |= set(queue[:idx + 1])
            done -= set(queue[idx + 1:])
            queue = queue[idx + 1:]
        if n in bars:
            hi = -1
            while ("w", hi + 1) in done:
                hi += 1
            free_at[bars.index(n) + 1] = hi
            A("s_barrier")
        c = vr(ACC + 4 * j) if j in seen else "0"
        seen.add(j)
        A(f"v_mfma_f32_16x16x32_bf16 {vr(ACC+4*j)}, {vr(slot[('w', s)])}, {vr(slot[('x',)+xt])}, {c}")
        for tag, tx in gap_reads[n]:
            A(tx)
            queue.append(tag)
        if cfg.tilemajor and n >= tm_start + 15:
            pos = (n - tm_start) % 15
            if pos == 1:
                pend += tile_tail(j + 1)
            budget = 8
            while pend:
                x = pend[0]
                if x == "|":
                    pend.pop(0)
                    if len(pend) > 3:
                        pend.insert(0, pend.pop(3))
                    else:
                        pend.insert(0, "s_nop 0")
                    break
                cst = 8 if x.startswith(("v_exp", "v_rcp")) else 4
                if cst > budget:
                    break
                budget -= cst
                A(pend.pop(0))
    if S:
        A("s_memtime s[86:87]\ns_memrealtime s[68:69]")
    for x in pend:
        A("s_nop 1" if x == "|" else x)
    A(f"s_nop {max(0, 7 - len(pend))}")
    for j in ([0] if cfg.tilemajor else range(8, -1, -1)):
        for x in tile_tail(j):
            A("s_nop 1" if x == "|" else x)
    WO = POOL
    ZA = POOL + 92
    ZS = POOL + 112
    AC2 = ACC
    A("s_barrier")

    def wo(tile, ks):
        return WO + 18 * tile + 4 * ks

    cnt = 0
    for tile in range(5):
        for ks in range(5):
            if tile < 4:
                col, ra, rb = 64 * (tile >> 1) + 8 * (tile & 1), vOa, vOb
            else:
                col, ra, rb = 256, vOc, vOd
            if ks < 4:
                o = WO_BASE + 32 * ks * 288 + col
                A(f"ds_read_b64_tr_b16 {vr(wo(tile,ks),2)}, v{ra} offset:{o}")
                A(f"ds_read_b64_tr_b16 {vr(wo(tile,ks)+2,2)}, v{ra} offset:{o+8*288}")
            else:
                A(f"ds_read_b64_tr_b16 {vr(wo(tile,ks),2)}, v{rb} offset:{WO_BASE+128*288+col}")
        A("s_waitcnt lgkmcnt(4)")
    A(f"""
    s_mov_b32 s57, {SENT}
    s_mov_b32 s58, 0
    s_add_u32 s39, s38, 4608
    s_cmp_ge_u32 s41, {cfg.early}
    s_cbranch_scc1 L_nodrain
    {"s_sleep %d" % cfg.delay if cfg.delay else "s_waitcnt vmcnt(0)"}
L_nodrain:
    s_waitcnt lgkmcnt(0)
    """)
    if S:
        A("s_memtime s[88:89]")
    A("s_cmp_eq_u32 s51, 0\ns_cbranch_scc0 L_z1")

    def zpart(dh):
        own = [0, 1, 4] if dh == 0 else [2, 3]
        oth = [2, 3] if dh == 0 else [0, 1, 4]
        A(f"L_poll{dh}:")
        for k, ks in enumerate(own):
            if ks < 4:
                A(f"buffer_load_dwordx4 {vr(ZA+4*ks)}, v{vL}, s[20:23], s38 offen offset:{1024*ks} sc1")
                A(f"buffer_load_dwordx4 {vr(ZS+4*k)}, v{vL}, s[20:23], s39 offen offset:{1024*ks} sc1")
            else:
                A(f"s_add_u32 s55, s38, 4096\ns_add_u32 s59, s39, 4096")
                A(f"buffer_load_dwordx2 {vr(ZA+4*ks,2)}, v{vL2}, s[20:23], s55 offen sc1")
                A(f"buffer_load_dwordx2 {vr(ZS+4*k,2)}, v{vL2}, s[20:23], s59 offen sc1")
        A("s_add_u32 s58, s58, 1\ns_mov_b64 s[64:65], 0")
        for k, ks in enumerate(own):
            A(f"s_waitcnt vmcnt({2*(len(own)-1-k)})")
            for r in (ZA + 4 * ks, ZS + 4 * k):
                A(f"v_cmp_eq_u32 vcc, s57, v{r}\ns_or_b64 s[64:65], s[64:65], vcc")
        A(f"""
    s_cmp_gt_u32 s58, 20000
    s_cbranch_scc1 L_go{dh}
    s_cmp_lg_u64 s[64:65], 0
    s_cbranch_scc1 L_poll{dh}
L_go{dh}:
    """)
        if S:
            A("s_memtime s[90:91]\ns_waitcnt lgkmcnt(0)")
        seen2 = False
        for k, ks in enumerate(own):
            nd = 4 if ks < 4 else 2
            for d in range(nd):
                a, s_ = ZA + 4 * ks + d, ZS + 4 * k + d
                A(f"v_fma_mix_f32 v{TMP+2*d}, v{a}, v{s_}, 0 op_sel_hi:[1,1,0]")
                A(f"v_fma_mix_f32 v{TMP+2*d+1}, v{a}, v{s_}, 0 op_sel:[1,1,0] op_sel_hi:[1,1,0]")
            for d in range(nd):
                A(f"v_cvt_pk_bf16_f32 v{ZA+4*ks+d}, v{TMP+2*d}, v{TMP+2*d+1}")
            if ks < 4:
                A(f"ds_write_b128 v{vZ}, {vr(ZA+4*ks)} offset:{1024*ks}")
            else:
                A(f"ds_write_b64 v{vZ}, {vr(ZA+4*ks,2)} offset:{1024*ks}")

        def mm(ks, firstk):
            for tile in range(4 + dh):
                c = "0" if firstk else vr(AC2 + 4 * tile)
                if ks < 4:
                    A(f"v_mfma_f32_16x16x32_bf16 {vr(AC2+4*tile)}, {vr(wo(tile,ks))}, {vr(ZA+4*ks)}, {c}")
                else:
                    A(f"v_mfma_f32_16x16x16_bf16 {vr(AC2+4*tile)}, {vr(wo(tile,ks),2)}, {vr(ZA+4*ks,2)}, {c}")

        mm(own[0], True)
        A("s_waitcnt lgkmcnt(0)\ns_barrier")
        for ks in oth:
            if ks < 4:
                A(f"ds_read_b128 {vr(ZA+4*ks)}, v{vZ} offset:{1024*ks}")
            else:
                A(f"ds_read_b64 {vr(ZA+4*ks,2)}, v{vZ} offset:{1024*ks}")
        for ks in own[1:]:
            mm(ks, False)
        for k, ks in enumerate(oth):
            A(f"s_waitcnt lgkmcnt({len(oth)-1-k})")
            mm(ks, False)
        A("s_nop 4")
        for v in range(2):
            for u in range(2):
                a = AC2 + 4 * (2 * v + u)
                A(f"v_cvt_pk_bf16_f32 v{TMP+4*v+2*u}, v{a}, v{a+1}")
                A(f"v_cvt_pk_bf16_f32 v{TMP+4*v+2*u+1}, v{a+2}, v{a+3}")
            A(f"buffer_store_dwordx4 {vr(TMP+4*v)}, v{vOut}, s[28:31], 0 offen offset:{64*v} {cfg.outflag}")
        if dh == 1:
            A(f"v_cvt_pk_bf16_f32 v{TMP+8}, v{AC2+16}, v{AC2+17}")
            A(f"v_cvt_pk_bf16_f32 v{TMP+9}, v{AC2+18}, v{AC2+19}")
            A(f"buffer_store_dwordx2 {vr(TMP+8,2)}, v{vOut8}, s[28:31], 0 offen offset:256 {cfg.outflag}")

    zpart(0)
    if S:
        A(f"""
    s_waitcnt vmcnt(0)
    s_memtime s[92:93]
    s_memrealtime s[96:97]
    s_waitcnt lgkmcnt(0)
    s_cmp_eq_u32 s3, 0
    s_cbranch_scc0 L_end
    """)
        for k, r in enumerate((82, 84, 86, 88, 90, 92)):
            A(f"s_sub_u32 s{r}, s{r}, s80\nv_mov_b32 v{8+k}, s{r}")
        A(f"""
    v_mov_b32 v14, s58
    s_sub_u32 s66, s66, s94
    s_sub_u32 s68, s68, s94
    v_mov_b32 v15, s66
    v_mov_b32 v16, s68
    v_mov_b32 v17, s94
    v_mov_b32 v18, s96
    v_mov_b32 v19, s2
    s_mov_b32 s22, 0x10000000
    s_mul_i32 s55, s2, 48
    s_add_u32 s55, s55, 0x8000000
    v_mov_b32 v20, 0
    s_mov_b64 exec, 1
    buffer_store_dwordx4 v[8:11], v20, s[20:23], s55 offen
    buffer_store_dwordx4 v[12:15], v20, s[20:23], s55 offen offset:16
    buffer_store_dwordx4 v[16:19], v20, s[20:23], s55 offen offset:32
    """)
    A("s_endpgm\nL_z1:")
    zpart(1)
    A("s_endpgm")

    nb = [0]

    def sbar():
        if S:
            A(f"s_memtime s[70:71]\ns_waitcnt lgkmcnt(0)\ns_sub_u32 s70, s70, s80\nv_writelane_b32 v20, s70, {2*nb[0]}")
        A("s_barrier")
        if S:
            A(f"s_memtime s[70:71]\ns_waitcnt lgkmcnt(0)\ns_sub_u32 s70, s70, s80\nv_writelane_b32 v20, s70, {2*nb[0]+1}")
        nb[0] += 1

    def sdump(off):
        if S:
            A(f"""
    s_mov_b32 s22, 0x10000000
    s_lshl_b32 s55, s2, 8
    s_add_u32 s55, s55, {off}
    v_lshlrev_b32 v21, 2, v2
    buffer_store_dword v20, v21, s[20:23], s55 offen
    """)
        nb[0] = 0

    A(f"""
L_loader:
    v_lshrrev_b32 v3, 2, v2
    v_mul_u32_u24 v3, 576, v3
    v_lshrrev_b32 v4, 5, v2
    v_lshlrev_b32 v4, 1, v4
    v_and_b32 v5, 3, v2
    v_xor_b32 v4, v4, v5
    v_lshl_add_u32 v3, v4, 4, v3
    s_lshl_b32 s46, s41, 6
    """)
    issued = 0

    def issue(upto):
        nonlocal issued
        while issued < min(upto, NS):
            for u in range(2):
                A(f"""
    s_mov_b32 m0, {(issued % RING)*2048 + 1024*u}
    s_add_u32 s47, s46, {w_soff(st[issued], u)}
    buffer_load_dwordx4 v3, s[16:19], s47 offen lds
    """)
            issued += 1

    issue(cfg.pre_w)
    sbar()
    landed = 0
    freed = -1
    for k in range(len(bars) + 1):
        ahead = max([need[k2] - cfg.slope * (k2 - 1 - k) for k2 in range(k + 1, len(need))] + [0])
        issue(min(freed + RING + 1, max(landed + cfg.depth, ahead)))
        assert issued - landed <= 30
        assert issued >= need[k], (k, issued, need[k])
        if need[k] > landed:
            A(f"s_waitcnt vmcnt({2*(issued - need[k])})")
            landed = need[k]
        sbar()
        if k >= 1:
            freed = free_at[k]
        if issued == NS and landed == NS:
            assert True
    sdump(0x8100000)
    A("s_endpgm")

    kfree = bars.index(bar_free) + 1
    kpub = max(k for k in range(1, len(bars) + 1) if bars[k - 1] <= first_store_op)
    kpoll = kpub
    A(f"""
L_helper:
    """)
    xdma(1, 8)
    A(f"""
    v_lshlrev_b32 v3, 4, v2
    v_mov_b32 v12, {SENT}
    v_lshlrev_b32 v4, 7, v2
    s_lshl_b32 s46, s40, 2
    v_mov_b32 v5, s46
    v_mov_b32 v6, 1
    """)
    tch = {}
    if cfg.wtouch:
        A(f"""
    s_lshr_b32 s47, s2, 3
    s_lshl_b32 s47, s47, 6
    s_add_u32 s47, s47, 112
    v_add_u32 v13, s47, v2
    s_mov_b32 s47, {(2**32 + 143)//144}
    v_mul_hi_u32 v14, s47, v13
    v_mul_u32_u24 v15, {82944 - 144*128}, v14
    v_lshl_add_u32 v13, v13, 7, v15
    v_lshrrev_b32 v14, 1, v2
    s_lshr_b32 s47, s2, 3
    s_lshl_b32 s47, s47, 5
    s_add_u32 s47, s47, 56
    v_add_u32 v14, s47, v14
    s_mov_b32 s47, {(2**32 + 71)//72}
    v_mul_hi_u32 v18, s47, v14
    v_mul_u32_u24 v15, {82944 - 72*128}, v18
    v_lshl_add_u32 v14, v14, 7, v15
    """)
        tch = {0: (13, 0), 1: (13, 18432), 3: (14, 128 * 576), 4: (13, 2 * 18432), 6: (13, 3 * 18432)}

    def touch(k):
        if k in tch:
            A(f"s_mov_b32 s47, {tch[k][1]}\nbuffer_load_dword v16, v{tch[k][0]}, s[16:19], s47 offen")

    sbar()
    touch(0)
    A(f"s_waitcnt vmcnt({1 if 0 in tch else 0})")
    sbar()
    for k in range(1, len(bars) + 1):
        if k != 6:
            touch(k)
        if 2 <= k <= 4:
            for u in range(6 * (k - 2), 6 * (k - 1)):
                A(f"s_add_u32 s47, s38, {1024*u}")
                A(f"buffer_store_dword v12, v3, s[20:23], s47 offen sc1")
        if k == 6:
            A("""
    s_waitcnt vmcnt(0)
    s_mov_b64 exec, 1
    buffer_atomic_add v6, v5, s[60:63], 0 offen sc1
    s_mov_b64 exec, -1
    """)
            touch(6)
            for u in range(6):
                A(f"s_mov_b32 s47, {8192*u}\nbuffer_load_dword v16, v4, s[32:35], s47 offen")
        if k == kpoll - 1:
            A("buffer_load_dword v17, v5, s[60:63], 0 offen sc1")
        if k == kpoll:
            A("""
    s_mov_b32 s58, 0
    s_branch L_hchk
L_hpoll:
    buffer_load_dword v17, v5, s[60:63], 0 offen sc1
L_hchk:
    s_add_u32 s58, s58, 1
    s_waitcnt vmcnt(0)
    v_readfirstlane_b32 s47, v17
    s_cmp_gt_u32 s58, 20000
    s_cbranch_scc1 L_hgo
    s_cmp_lt_u32 s47, 9
    s_cbranch_scc1 L_hpoll
L_hgo:
    """)
        sbar()
        if k == kfree:
            for u in range(41):
                A(f"""
    s_mov_b32 m0, {WO_BASE + 1024*u}
    s_mov_b32 s47, {1024*u}
    buffer_load_dwordx4 v3, s[32:35], s47 offen lds
    """)
    assert 7 < kpoll
    A("s_waitcnt vmcnt(0)")
    sbar()
    sdump(0x8200000)
    A("""
L_end:
    s_endpgm
.fill 32, 4, 0xbf800000
L_textend:
    """)
    txt = A.text() + f"""
.section .rodata,"a"
.p2align 6
.amdhsa_kernel {NAME}
  .amdhsa_next_free_vgpr {nv}
  .amdhsa_next_free_sgpr 100
  .amdhsa_accum_offset {(nv+3)//4*4}
  .amdhsa_group_segment_fixed_size 0
  .amdhsa_kernarg_size 48
  .amdhsa_user_sgpr_count 2
  .amdhsa_user_sgpr_kernarg_segment_ptr 1
  .amdhsa_system_sgpr_workgroup_id_x 1
.end_amdhsa_kernel
"""
    info = dict(nslots=nslots, nv=nv, bars=bars, need=need, free=free_at, kpoll=kpoll, kfree=kfree, kpub=kpub,
                npre=len(gap_reads[-1]))
    return txt, info


if __name__ == "__main__":
    cfg = Cfg()
    for a in sys.argv[2:]:
        k, v = a.split("=")
        cur = getattr(cfg, k)
        setattr(cfg, k, v.replace("+", " ") if isinstance(cur, str) else type(cur)(int(v)))
    txt, info = build(cfg)
    open(sys.argv[1], "w").write(txt)
    print(info)
```

```python
import sys, struct

NAME = "standalone__autoregressive_conv_wavenet__speech_kernel"
T, D, KT = 4000, 144, 15
XB = T * D * 2
WB = KT * D * 2 * D * 2
WOB = D * D * 2
INBOX = 18432
LOG2E = 1.4426950408889634
SENT = 0x44004400


def f2u(f):
    return struct.unpack("<I", struct.pack("<f", f))[0]


class Asm:
    def __init__(self):
        self.l = []

    def __call__(self, s):
        for x in s.strip("\n").split("\n"):
            x = x.strip()
            if not x:
                continue
            self.l.append(x if x.endswith(":") or x.startswith(".") or x.startswith(";") else "    " + x)

    def text(self):
        return "\n".join(self.l) + "\n"


def vr(b, n=4):
    return f"v[{b}:{b+n-1}]"


class Cfg:
    ring = 32
    lead = 12
    phase = 54
    first_phase = 18
    depth = 14
    swz = True
    burst = 36
    coop = False
    slope = 7
    wtouch = True
    early = 2
    delay = 0
    amp = -1
    pre_w = 2
    tilemajor = True
    stamps = False
    stflag = "sc1"
    outflag = ""
    prio = 0


def build(cfg):
    A = Asm()
    RING = cfg.ring
    XBASE = RING * 2048
    NXI = 89
    LDS = XBASE + NXI * 1024
    WO_BASE = 0 if cfg.tilemajor else 8192
    ZX_BASE = XBASE

    order = [("c", 0), ("c", 1), ("r", 4), ("c", 2), ("c", 3)] if cfg.tilemajor else \
            [("c", 0), ("c", 1), ("c", 2), ("c", 3), ("r", 4)]
    st = []
    for kind, cc in order:
        for i in (range(15) if kind == "c" else range(0, 15, 2)):
            st.append((kind, cc, i))
    NS = len(st)
    ops = []
    for s, (kind, cc, i) in enumerate(st):
        if cfg.tilemajor and cc == 3:
            continue
        for j in range(8, -1, -1):
            ops.append((j, s, (cc, j - i)))
    tm_start = len(ops)
    if cfg.tilemajor:
        s0 = NS - 15
        for j in range(8, -1, -1):
            for i in range(15):
                ops.append((j, s0 + i, (3, j - i)))
    NO = len(ops)

    def w_soff(step, u):
        kind, cc, i = step
        if kind == "c":
            return (i * 144 + 32 * cc + 16 * u) * 576
        return ((i + u) * 144 + 128) * 576

    ACC = 8
    vX, vY, vY2, vW, vSt, vB, vG, vL, vL2, vZ = 44, 45, 46, 47, 48, 49, 50, 51, 52, 53
    vOa, vOb, vOc, vOd, vOut, vOut8 = 54, 55, 56, 57, 58, 59
    vSt8 = 7
    TMP = 60
    vXS = 76
    POOL = 84
    first, last = {}, {}
    for n, (j, s, xt) in enumerate(ops):
        for tag in (("w", s), ("x",) + xt):
            first.setdefault(tag, n)
            last[tag] = n
    cap = [1] * NO
    if cfg.tilemajor:
        for g in range(tm_start - cfg.burst, tm_start + 15):
            cap[g] = 2
        for g in range(tm_start + 15, NO):
            cap[g] = 0
    load = [0] * NO
    place = {}
    for tag in sorted(first, key=lambda t: -first[t]):
        nrd = 2 if tag[0] == "w" else 1
        gs = []
        g = first[tag] - cfg.lead
        for k in range(nrd):
            while g >= 0 and load[g] >= cap[g]:
                g -= 1
            if g >= 0:
                load[g] += 1
            gs.append(max(g, -1))
        place[tag] = sorted(gs)
    slot = {}
    nslots = 0
    busy = []
    for tag in sorted(place, key=lambda t: (place[t][0], first[t])):
        g = place[tag][0]
        for k in range(nslots):
            if busy[k] <= g:
                break
        else:
            k = nslots
            nslots += 1
            busy.append(0)
        busy[k] = last[tag]
        slot[tag] = POOL + 4 * k
    nv = max(POOL + 4 * nslots, POOL + 132)
    assert nv <= 256, nv

    def rd_text(tag):
        b = slot[tag]
        if tag[0] == "w":
            o = (tag[1] % RING) * 2048
            return [f"ds_read_b64_tr_b16 {vr(b,2)}, v{vW} offset:{o}",
                    f"ds_read_b64_tr_b16 {vr(b+2,2)}, v{vW} offset:{o+256}"]
        _, cc, e = tag
        off = (28 + 2 * e) * 288
        if cc < 4:
            ra = vXS + (14 + e) % 8 if cfg.swz else vX
            return [f"ds_read_b128 {vr(b)}, v{ra} offset:{off + 64*cc}"]
        return [f"ds_read_b128 {vr(b)}, v{vY2 if e == -14 else vY} offset:{off}"]

    gap_reads = {g: [] for g in range(-1, NO)}
    for tag in sorted(place, key=lambda t: (first[t], t[0] == "w")):
        for g, tx in zip(place[tag], rd_text(tag)):
            gap_reads[g].append((tag, tx))
    last_w_gap = max(place[t][-1] for t in place if t[0] == "w")
    bars = []
    n = cfg.first_phase
    while n <= last_w_gap:
        bars.append(n)
        n += cfg.phase
    if cfg.tilemajor:
        bar_free = tm_start + 15
    else:
        bar_free = min(n for n in range(NO) if ops[n][1] == 58)
        bars = [b for b in bars if abs(b - bar_free) > 9]
    bars = sorted(set(bars + [bar_free]))
    first_store_op = tm_start + 15 if cfg.tilemajor else NO

    edges = [-1] + bars + [NO]
    need = []
    for k in range(len(edges) - 1):
        m = [t[1] for t in place if t[0] == "w" and place[t][0] < edges[k + 1]]
        need.append(max(m) + 1)

    S = cfg.stamps
    A(f"""; wavenet gated dilated conv + projection, fused
; @launch grid=(256,1,1) block=(384,1,1) lds={LDS}
.amdgcn_target "amdgcn-amd-amdhsa--gfx950"
.text
.globl {NAME}
.p2align 8
.type {NAME},@function
{NAME}:
    s_load_dwordx8 s[4:11], s[0:1], 0
    s_load_dwordx4 s[24:27], s[0:1], 32
    """)
    if S:
        A("s_memtime s[80:81]\ns_memrealtime s[94:95]")
    AMP = cfg.amp
    if AMP >= 0:
        A("s_memrealtime s[94:95]")

    if AMP == 7:
        A("s_memtime s[92:93]")

    def astamp(k):
        if AMP == k:
            A("s_memrealtime s[96:97]")
        if (AMP, k) in ((5, 1), (8, 2)):
            A("s_memtime s[92:93]")
        if (AMP, k) in ((5, 2), (7, 1), (8, 4)):
            A("s_memtime s[96:97]")
        if (AMP, k) == (6, 1):
            A("s_memrealtime s[92:93]")
        if (AMP, k) == (6, 2):
            A("s_memrealtime s[96:97]")
    A(f"""
    s_cmp_ge_u32 s2, 256
    s_cbranch_scc1 L_end
    s_and_b32 s42, s2, 7
    s_lshr_b32 s43, s2, 3
    s_mul_i32 s44, s42, 27
    s_add_u32 s44, s44, s43
    s_mul_i32 s45, s42, 5
    s_add_u32 s45, s45, s43
    s_add_u32 s45, s45, {216 - 27}
    s_cmp_ge_u32 s43, 27
    s_cselect_b32 s44, s45, s44
    s_cmp_ge_u32 s44, 252
    s_cbranch_scc1 L_end
    s_mul_hi_u32 s40, s44, 0x1c71c71d ; group
    s_mul_i32 s45, s40, 9
    s_sub_u32 s41, s44, s45           ; member
    s_getpc_b64 s[46:47]
L_pc:
    v_lshlrev_b32 v1, 7, v0
    v_cmp_gt_u32 vcc, (L_textend-L_pc)/128, v0
    s_and_saveexec_b64 s[48:49], vcc
    s_cbranch_execz L_nopf
    global_load_dword v7, v1, s[46:47]
L_nopf:
    s_mov_b64 exec, s[48:49]
    v_lshrrev_b32 v1, 6, v0
    v_and_b32 v2, 63, v0              ; lane
    s_nop 0
    v_readfirstlane_b32 s3, v1
    s_cmp_ge_u32 s40, 14
    s_cselect_b32 s42, 1, 0           ; batch
    s_mul_i32 s43, s42, 14
    s_sub_u32 s43, s40, s43
    s_mul_i32 s39, s42, {XB}
    s_mul_i32 s45, s43, {288*288}
    s_sub_u32 s45, s45, {28*288}
    s_mul_i32 s38, s44, {INBOX}
    s_min_u32 s46, s3, 4
    s_cmp_eq_u32 s3, 5
    s_cselect_b32 s46, 8, s46
    s_mov_b32 s47, {(2**32 + 17)//18}
    """)
    for c in range(2):
        A(f"""
    s_add_u32 s48, s46, {4*c}
    s_lshl_b32 s48, s48, 6
    v_add_u32 v3, s48, v2
    """)
        if cfg.swz:
            A(f"""
    v_mul_hi_u32 v4, s47, v3          ; row
    v_mul_u32_u24 v5, 18, v4
    v_sub_u32 v5, v3, v5
    v_lshrrev_b32 v4, 2, v4
    v_and_b32 v4, 2, v4
    v_xor_b32 v4, v4, v5
    v_cmp_gt_u32 vcc, 16, v5
    v_sub_u32 v3, v3, v5
    s_nop 0
    v_cndmask_b32 v4, v5, v4, vcc
    v_add_u32 v3, v3, v4
    """)
        A(f"v_lshl_add_u32 v{8+c}, v3, 4, s45")
    A(f"""
    s_lshl_b32 s46, s46, 10
    s_add_u32 s46, s46, {XBASE}
    s_waitcnt lgkmcnt(0)
    s_add_u32 s12, s4, s39            ; x srd s[12:15]
    s_addc_u32 s13, s5, 0
    s_and_b32 s13, s13, 0xffff
    s_mov_b32 s14, {XB}
    s_mov_b32 s15, 0x20000
    s_mov_b32 s16, s6                 ; w srd s[16:19]
    s_and_b32 s17, s7, 0xffff
    s_mov_b32 s18, {WB}
    s_mov_b32 s19, 0x20000
    s_mov_b32 s20, s26
    s_and_b32 s21, s27, 0xffff
    s_mov_b32 s22, {252*INBOX}
    s_mov_b32 s23, 0x20000
    s_add_u32 s28, s10, s39
    s_addc_u32 s29, s11, 0
    s_and_b32 s29, s29, 0xffff
    s_mov_b32 s30, {XB}
    s_mov_b32 s31, 0x20000
    s_mov_b32 s32, s8                 ; w_o srd s[32:35]
    s_and_b32 s33, s9, 0xffff
    s_mov_b32 s34, {WOB}
    s_mov_b32 s35, 0x20000
    s_mov_b32 s60, s24
    s_and_b32 s61, s25, 0xffff
    s_mov_b32 s62, 256
    s_mov_b32 s63, 0x20000
    """)
    astamp(0)
    if S:
        A("s_memtime s[82:83]")
    A(f"""
    s_cmp_eq_u32 s3, 4
    s_cbranch_scc1 L_loader
    """)

    def xdma(nclass, first):
        for k in range(10):
            for c in range(nclass):
                if k == 9 and first + 4 * c == 8:
                    continue
                A(f"s_add_u32 m0, s46, {9216*k + 4096*c}")
                if k > 0:
                    A(f"v_add_u32 v{8+c}, 9216, v{8+c}")
                else:
                    A("s_nop 0")
                A(f"buffer_load_dwordx4 v{8+c}, s[12:15], 0 offen lds")

    if cfg.coop:
        A(f"""
    s_mul_i32 s47, s41, {80*128}
    s_add_u32 s47, s47, s45
    v_lshlrev_b32 v4, 7, v0
    v_add_u32 v4, s47, v4
    v_cmp_gt_u32 vcc, 80, v0
    s_and_saveexec_b64 s[48:49], vcc
    s_cbranch_execz L_nocoop
    buffer_load_dword v7, v4, s[12:15], 0 offen
L_nocoop:
    s_mov_b64 exec, s[48:49]
    """)
    A("""
    s_cmp_eq_u32 s3, 5
    s_cbranch_scc1 L_helper
    """)
    xdma(2, 0)
    A("s_barrier")
    A(f"""
    s_and_b32 s50, s3, 1              ; p
    s_lshr_b32 s51, s3, 1
    v_and_b32 v4, 15, v2              ; r
    v_lshrrev_b32 v5, 4, v2           ; q
    v_mul_u32_u24 v1, 5184, v4
    s_mul_i32 s52, s50, 288
    s_add_u32 s52, s52, {XBASE}
    v_add_u32 v{vX}, s52, v1
    v_and_b32 v6, 1, v5
    v_lshlrev_b32 v6, 4, v6
    v_add_u32 v6, 256, v6
    v_add_u32 v{vY2}, v{vX}, v6
    v_lshrrev_b32 v6, 1, v5
    v_mul_u32_u24 v6, 576, v6
    v_sub_u32 v{vY}, v{vY2}, v6
    """)
    if cfg.swz:
        A(f"v_mul_u32_u24 v3, 18, v4\nv_add_u32 v3, s50, v3")
        for m in range(8):
            A(f"""
    v_add_u32 v6, {2*m}, v3
    v_lshrrev_b32 v6, 2, v6
    v_and_b32 v6, 2, v6
    v_xor_b32 v6, v6, v5
    v_lshl_add_u32 v{vXS+m}, v6, 4, v{vX}
    """)
    A(f"""
    v_lshl_add_u32 v{vX}, v5, 4, v{vX}
    v_lshlrev_b32 v{vW}, 9, v5
    v_bfe_u32 v6, v2, 2, 2
    v_lshl_add_u32 v{vW}, v6, 6, v{vW}
    v_and_b32 v6, 1, v5
    v_xor_b32 v6, s51, v6
    v_lshl_add_u32 v{vW}, v6, 5, v{vW}
    v_and_b32 v6, 3, v2
    v_lshl_add_u32 v{vW}, v6, 3, v{vW}
    v_and_b32 v6, 31, v2
    v_lshlrev_b32 v{vL2}, 4, v6
    v_lshrrev_b32 v6, 5, v2
    v_mul_u32_u24 v3, {INBOX}, v6
    v_add_u32 v{vSt}, v{vL2}, v3
    v_lshl_add_u32 v{vL2}, v6, 3, v{vL2}
    v_lshlrev_b32 v{vL}, 4, v2
    s_lshl_b32 s53, s41, 1
    s_add_u32 s53, s53, s51
    s_mul_i32 s54, s40, {9*INBOX}
    s_mul_i32 s55, s50, 9216
    s_add_u32 s54, s54, s55
    s_add_u32 s38, s38, s55
    s_lshl_b32 s55, s53, 9
    s_add_u32 s72, s54, s55
    s_add_u32 s73, s72, {2*INBOX}
    s_add_u32 s74, s72, {4*INBOX}
    s_add_u32 s75, s72, {6*INBOX}
    s_add_u32 s76, s72, {8*INBOX}
    s_cmp_lt_u32 s53, 9
    s_mov_b32 s56, {f2u(-LOG2E)}
    s_cselect_b32 s56, {f2u(-2*LOG2E)}, s56
    s_cselect_b32 s57, 2.0, 1.0
    s_cselect_b32 s58, -1.0, 0
    v_mov_b32 v{vB}, s57
    v_mov_b32 v{vG}, s58
    v_and_b32 v6, 1, v5
    v_lshlrev_b32 v6, 2, v6
    v_bfe_u32 v3, v2, 2, 2
    v_add_u32 v6, v6, v3              ; 4*(q&1) + r'
    v_lshrrev_b32 v3, 1, v5
    v_lshl_add_u32 v{vOa}, v3, 4, v6
    v_lshl_add_u32 v{vOb}, v3, 3, v6
    v_mul_u32_u24 v{vOa}, 288, v{vOa}
    v_mul_u32_u24 v{vOb}, 288, v{vOb}
    v_and_b32 v3, 3, v2
    v_lshl_add_u32 v{vOc}, v3, 3, v{vOa}
    v_lshl_add_u32 v{vOd}, v3, 3, v{vOb}
    v_lshl_add_u32 v{vOa}, v3, 4, v{vOa}
    v_lshl_add_u32 v{vOb}, v3, 4, v{vOb}
    s_lshl_b32 s52, s51, 7
    v_add_u32 v{vOa}, s52, v{vOa}
    v_add_u32 v{vOb}, s52, v{vOb}
    s_mul_i32 s53, s43, 288
    s_add_u32 s53, s53, s50
    s_lshl_b32 s55, s41, 1
    s_add_u32 s53, s53, s55
    s_mul_i32 s53, s53, 288
    v_add_u32 v6, s53, v1
    v_lshl_add_u32 v{vOut8}, v5, 3, v6
    v_lshl_add_u32 v{vOut}, v5, 4, v6
    v_add_u32 v{vOut}, s52, v{vOut}
    s_mul_i32 s55, s50, 5120
    s_add_u32 s55, s55, {ZX_BASE}
    v_add_u32 v{vZ}, s55, v{vL}
    """)
    if cfg.prio:
        A(f"s_setprio {cfg.prio}")
    A(f"""
    s_waitcnt vmcnt(0)
    v_lshrrev_b32 v6, 5, v2
    v_lshlrev_b32 v6, 31, v6
    v_or_b32 v{vSt8}, v{vSt}, v6
    s_barrier
    """)
    astamp(1)
    if S:
        A("s_memrealtime s[66:67]")
        A("s_memtime s[84:85]\ns_waitcnt lgkmcnt(0)")

    def act_instrs(j, dst):
        a = ACC + 4 * j
        o = []
        o += [f"v_mul_f32 v{a+k}, s56, v{a+k}" for k in range(4)]
        o += [f"v_exp_f32 v{a+k}, v{a+k}" for k in range(4)]
        o += [f"v_add_f32 v{a+k}, 1.0, v{a+k}" for k in range(4)]
        o += [f"v_rcp_f32 v{a+k}, v{a+k}" for k in range(4)]
        o += [f"v_fma_f32 v{a+k}, v{a+k}, v{vB}, v{vG}" for k in range(4)]
        o += [f"v_cvt_pk_f16_f32 v{dst}, v{a}, v{a+1}", f"v_cvt_pk_f16_f32 v{dst+1}, v{a+2}, v{a+3}"]
        return o

    def tile_tail(j):
        t = TMP + 4 * ((j // 2) % 4)
        if j == 8:
            o = act_instrs(8, t)
            o += [f"v_mov_b32 v{t+2}, v{t}", f"v_mov_b32 v{t+3}, v{t+1}"]
        elif j % 2:
            return act_instrs(j, t + 2)
        else:
            o = act_instrs(j, t)
        o += ["|", f"v_permlane32_swap_b32 v{t}, v{t+2}", f"v_permlane32_swap_b32 v{t+1}, v{t+3}"]
        o.append(f"buffer_store_dwordx4 {vr(t)}, v{vSt8 if j == 8 else vSt}, s[20:23], s{72 + j//2} offen {cfg.stflag}")
        return o

    queue = []
    done = set()
    free_at = {}
    for tag, tx in gap_reads[-1]:
        A(tx)
        queue.append(tag)
    assert len(queue) <= 15, len(queue)
    pend = []
    lastx = ""
    seen = set()
    for n, (j, s, xt) in enumerate(ops):
        needs = {("w", s), ("x",) + xt} - done
        if n == bar_free:
            needs |= {t for t in queue if t[0] == "w" and (cfg.tilemajor or t[1] <= 58)}
        if needs:
            idx = max(k for k, tg in enumerate(queue) if tg in needs)
            idx = max(idx, len(queue) - 1 - 15)
            rem = len(queue) - 1 - idx
            A(f"s_waitcnt lgkmcnt({rem})")
            done |= set(queue[:idx + 1])
            done -= set(queue[idx + 1:])
            queue = queue[idx + 1:]
        if n in bars:
            hi = -1
            while ("w", hi + 1) in done:
                hi += 1
            free_at[bars.index(n) + 1] = hi
            A("s_barrier")
        c = vr(ACC + 4 * j) if j in seen else "0"
        seen.add(j)
        A(f"v_mfma_f32_16x16x32_bf16 {vr(ACC+4*j)}, {vr(slot[('w', s)])}, {vr(slot[('x',)+xt])}, {c}")
        for tag, tx in gap_reads[n]:
            A(tx)
            queue.append(tag)
        if cfg.tilemajor and n >= tm_start + 15:
            pos = (n - tm_start) % 15
            if pos == 1:
                pend += tile_tail(j + 1)
            budget = 8
            while pend:
                x = pend[0]
                if x == "|":
                    pend.pop(0)
                    if len(pend) > 3:
                        pend.insert(0, pend.pop(3))
                    else:
                        pend.insert(0, "s_nop 0")
                    break
                cst = 8 if x.startswith(("v_exp", "v_rcp")) else 4
                if cst > budget:
                    break
                budget -= cst
                A(pend.pop(0))
    astamp(2)
    if S:
        A("s_memtime s[86:87]\ns_memrealtime s[68:69]")
    for x in pend:
        A("s_nop 1" if x == "|" else x)
    A(f"s_nop {max(0, 7 - len(pend))}")
    for j in ([0] if cfg.tilemajor else range(8, -1, -1)):
        for x in tile_tail(j):
            A("s_nop 1" if x == "|" else x)
    WO = POOL
    ZA = POOL + 92
    ZS = POOL + 112
    AC2 = ACC
    A("s_barrier")

    def wo(tile, ks):
        return WO + 18 * tile + 4 * ks

    cnt = 0
    for tile in range(5):
        for ks in range(5):
            if tile < 4:
                col, ra, rb = 64 * (tile >> 1) + 8 * (tile & 1), vOa, vOb
            else:
                col, ra, rb = 256, vOc, vOd
            if ks < 4:
                o = WO_BASE + 32 * ks * 288 + col
                A(f"ds_read_b64_tr_b16 {vr(wo(tile,ks),2)}, v{ra} offset:{o}")
                A(f"ds_read_b64_tr_b16 {vr(wo(tile,ks)+2,2)}, v{ra} offset:{o+8*288}")
            else:
                A(f"ds_read_b64_tr_b16 {vr(wo(tile,ks),2)}, v{rb} offset:{WO_BASE+128*288+col}")
        A("s_waitcnt lgkmcnt(4)")
    A(f"""
    s_mov_b32 s57, {SENT}
    s_mov_b32 s58, 0
    s_add_u32 s39, s38, 4608
    s_cmp_ge_u32 s41, {cfg.early}
    s_cbranch_scc1 L_nodrain
    {"s_sleep %d" % cfg.delay if cfg.delay else "s_waitcnt vmcnt(0)"}
L_nodrain:
    s_waitcnt lgkmcnt(0)
    """)
    if S:
        A("s_memtime s[88:89]")
    A("s_cmp_eq_u32 s51, 0\ns_cbranch_scc0 L_z1")

    def zpart(dh):
        own = [0, 1, 4] if dh == 0 else [2, 3]
        oth = [2, 3] if dh == 0 else [0, 1, 4]
        A(f"L_poll{dh}:")
        for k, ks in enumerate(own):
            if ks < 4:
                A(f"buffer_load_dwordx4 {vr(ZA+4*ks)}, v{vL}, s[20:23], s38 offen offset:{1024*ks} sc1")
                A(f"buffer_load_dwordx4 {vr(ZS+4*k)}, v{vL}, s[20:23], s39 offen offset:{1024*ks} sc1")
            else:
                A(f"s_add_u32 s55, s38, 4096\ns_add_u32 s59, s39, 4096")
                A(f"buffer_load_dwordx2 {vr(ZA+4*ks,2)}, v{vL2}, s[20:23], s55 offen sc1")
                A(f"buffer_load_dwordx2 {vr(ZS+4*k,2)}, v{vL2}, s[20:23], s59 offen sc1")
        A("s_add_u32 s58, s58, 1\ns_mov_b64 s[64:65], 0")
        for k, ks in enumerate(own):
            A(f"s_waitcnt vmcnt({2*(len(own)-1-k)})")
            for r in (ZA + 4 * ks, ZS + 4 * k):
                A(f"v_cmp_eq_u32 vcc, s57, v{r}\ns_or_b64 s[64:65], s[64:65], vcc")
        A(f"""
    s_cmp_gt_u32 s58, 20000
    s_cbranch_scc1 L_go{dh}
    s_cmp_lg_u64 s[64:65], 0
    s_cbranch_scc1 L_poll{dh}
L_go{dh}:
    """)
        astamp(3)
        if S:
            A("s_memtime s[90:91]\ns_waitcnt lgkmcnt(0)")
        seen2 = False
        for k, ks in enumerate(own):
            nd = 4 if ks < 4 else 2
            for d in range(nd):
                a, s_ = ZA + 4 * ks + d, ZS + 4 * k + d
                A(f"v_fma_mix_f32 v{TMP+2*d}, v{a}, v{s_}, 0 op_sel_hi:[1,1,0]")
                A(f"v_fma_mix_f32 v{TMP+2*d+1}, v{a}, v{s_}, 0 op_sel:[1,1,0] op_sel_hi:[1,1,0]")
            for d in range(nd):
                A(f"v_cvt_pk_bf16_f32 v{ZA+4*ks+d}, v{TMP+2*d}, v{TMP+2*d+1}")
            if ks < 4:
                A(f"ds_write_b128 v{vZ}, {vr(ZA+4*ks)} offset:{1024*ks}")
            else:
                A(f"ds_write_b64 v{vZ}, {vr(ZA+4*ks,2)} offset:{1024*ks}")

        def mm(ks, firstk):
            for tile in range(4 + dh):
                c = "0" if firstk else vr(AC2 + 4 * tile)
                if ks < 4:
                    A(f"v_mfma_f32_16x16x32_bf16 {vr(AC2+4*tile)}, {vr(wo(tile,ks))}, {vr(ZA+4*ks)}, {c}")
                else:
                    A(f"v_mfma_f32_16x16x16_bf16 {vr(AC2+4*tile)}, {vr(wo(tile,ks),2)}, {vr(ZA+4*ks,2)}, {c}")

        mm(own[0], True)
        A("s_waitcnt lgkmcnt(0)\ns_barrier")
        for ks in oth:
            if ks < 4:
                A(f"ds_read_b128 {vr(ZA+4*ks)}, v{vZ} offset:{1024*ks}")
            else:
                A(f"ds_read_b64 {vr(ZA+4*ks,2)}, v{vZ} offset:{1024*ks}")
        for ks in own[1:]:
            mm(ks, False)
        for k, ks in enumerate(oth):
            A(f"s_waitcnt lgkmcnt({len(oth)-1-k})")
            mm(ks, False)
        A("s_nop 4")
        for v in range(2):
            for u in range(2):
                a = AC2 + 4 * (2 * v + u)
                A(f"v_cvt_pk_bf16_f32 v{TMP+4*v+2*u}, v{a}, v{a+1}")
                A(f"v_cvt_pk_bf16_f32 v{TMP+4*v+2*u+1}, v{a+2}, v{a+3}")
            A(f"buffer_store_dwordx4 {vr(TMP+4*v)}, v{vOut}, s[28:31], 0 offen offset:{64*v} {cfg.outflag}")
        if dh == 1:
            A(f"v_cvt_pk_bf16_f32 v{TMP+8}, v{AC2+16}, v{AC2+17}")
            A(f"v_cvt_pk_bf16_f32 v{TMP+9}, v{AC2+18}, v{AC2+19}")
            A(f"buffer_store_dwordx2 {vr(TMP+8,2)}, v{vOut8}, s[28:31], 0 offen offset:256 {cfg.outflag}")

    zpart(0)
    if AMP >= 0:
        A("s_waitcnt vmcnt(0)")
        astamp(4)
        A(f"""
    s_waitcnt lgkmcnt(0)
    s_sub_u32 s96, s96, {"s94" if AMP < 5 else "s92"}
    {"s_lshr_b32 s96, s96, 2" if AMP in (5, 7, 8) else "s_lshl_b32 s96, s96, 3"}
    s_add_u32 s96, s96, 2000
    s_cmp_lt_u32 s40, 24
    s_cselect_b32 s96, s96, 2000
L_amp:
    s_memrealtime s[98:99]
    s_waitcnt lgkmcnt(0)
    s_sub_u32 s98, s98, s94
    s_cmp_lt_u32 s98, s96
    s_cbranch_scc1 L_amp
    """)
    if S:
        A(f"""
    s_waitcnt vmcnt(0)
    s_memtime s[92:93]
    s_memrealtime s[96:97]
    s_waitcnt lgkmcnt(0)
    s_cmp_eq_u32 s3, 0
    s_cbranch_scc0 L_end
    """)
        for k, r in enumerate((82, 84, 86, 88, 90, 92)):
            A(f"s_sub_u32 s{r}, s{r}, s80\nv_mov_b32 v{8+k}, s{r}")
        A(f"""
    v_mov_b32 v14, s58
    s_sub_u32 s66, s66, s94
    s_sub_u32 s68, s68, s94
    v_mov_b32 v15, s66
    v_mov_b32 v16, s68
    v_mov_b32 v17, s94
    v_mov_b32 v18, s96
    v_mov_b32 v19, s2
    s_mov_b32 s22, 0x10000000
    s_mul_i32 s55, s2, 48
    s_add_u32 s55, s55, 0x8000000
    v_mov_b32 v20, 0
    s_mov_b64 exec, 1
    buffer_store_dwordx4 v[8:11], v20, s[20:23], s55 offen
    buffer_store_dwordx4 v[12:15], v20, s[20:23], s55 offen offset:16
    buffer_store_dwordx4 v[16:19], v20, s[20:23], s55 offen offset:32
    """)
    A("s_endpgm\nL_z1:")
    zpart(1)
    A("s_endpgm")

    nb = [0]

    def sbar():
        if S:
            A(f"s_memtime s[70:71]\ns_waitcnt lgkmcnt(0)\ns_sub_u32 s70, s70, s80\nv_writelane_b32 v20, s70, {2*nb[0]}")
        A("s_barrier")
        if S:
            A(f"s_memtime s[70:71]\ns_waitcnt lgkmcnt(0)\ns_sub_u32 s70, s70, s80\nv_writelane_b32 v20, s70, {2*nb[0]+1}")
        nb[0] += 1

    def sdump(off):
        if S:
            A(f"""
    s_mov_b32 s22, 0x10000000
    s_lshl_b32 s55, s2, 8
    s_add_u32 s55, s55, {off}
    v_lshlrev_b32 v21, 2, v2
    buffer_store_dword v20, v21, s[20:23], s55 offen
    """)
        nb[0] = 0

    A(f"""
L_loader:
    v_lshrrev_b32 v3, 2, v2
    v_mul_u32_u24 v3, 576, v3
    v_lshrrev_b32 v4, 5, v2
    v_lshlrev_b32 v4, 1, v4
    v_and_b32 v5, 3, v2
    v_xor_b32 v4, v4, v5
    v_lshl_add_u32 v3, v4, 4, v3
    s_lshl_b32 s46, s41, 6
    """)
    issued = 0

    def issue(upto):
        nonlocal issued
        while issued < min(upto, NS):
            for u in range(2):
                A(f"""
    s_mov_b32 m0, {(issued % RING)*2048 + 1024*u}
    s_add_u32 s47, s46, {w_soff(st[issued], u)}
    buffer_load_dwordx4 v3, s[16:19], s47 offen lds
    """)
            issued += 1

    issue(cfg.pre_w)
    sbar()
    landed = 0
    freed = -1
    for k in range(len(bars) + 1):
        ahead = max([need[k2] - cfg.slope * (k2 - 1 - k) for k2 in range(k + 1, len(need))] + [0])
        issue(min(freed + RING + 1, max(landed + cfg.depth, ahead)))
        assert issued - landed <= 30
        assert issued >= need[k], (k, issued, need[k])
        if need[k] > landed:
            A(f"s_waitcnt vmcnt({2*(issued - need[k])})")
            landed = need[k]
        sbar()
        if k >= 1:
            freed = free_at[k]
        if issued == NS and landed == NS:
            assert True
    sdump(0x8100000)
    A("s_endpgm")

    kfree = bars.index(bar_free) + 1
    kpub = max(k for k in range(1, len(bars) + 1) if bars[k - 1] <= first_store_op)
    kpoll = kpub
    A(f"""
L_helper:
    """)
    xdma(1, 8)
    A(f"""
    v_lshlrev_b32 v3, 4, v2
    v_mov_b32 v12, {SENT}
    v_lshlrev_b32 v4, 7, v2
    s_lshl_b32 s46, s40, 2
    v_mov_b32 v5, s46
    v_mov_b32 v6, 1
    """)
    tch = {}
    if cfg.wtouch:
        A(f"""
    s_lshr_b32 s47, s2, 3
    s_lshl_b32 s47, s47, 6
    s_add_u32 s47, s47, 112
    v_add_u32 v13, s47, v2
    s_mov_b32 s47, {(2**32 + 143)//144}
    v_mul_hi_u32 v14, s47, v13
    v_mul_u32_u24 v15, {82944 - 144*128}, v14
    v_lshl_add_u32 v13, v13, 7, v15
    v_lshrrev_b32 v14, 1, v2
    s_lshr_b32 s47, s2, 3
    s_lshl_b32 s47, s47, 5
    s_add_u32 s47, s47, 56
    v_add_u32 v14, s47, v14
    s_mov_b32 s47, {(2**32 + 71)//72}
    v_mul_hi_u32 v18, s47, v14
    v_mul_u32_u24 v15, {82944 - 72*128}, v18
    v_lshl_add_u32 v14, v14, 7, v15
    """)
        tch = {0: (13, 0), 1: (13, 18432), 3: (14, 128 * 576), 4: (13, 2 * 18432), 6: (13, 3 * 18432)}

    def touch(k):
        if k in tch:
            A(f"s_mov_b32 s47, {tch[k][1]}\nbuffer_load_dword v16, v{tch[k][0]}, s[16:19], s47 offen")

    sbar()
    touch(0)
    A(f"s_waitcnt vmcnt({1 if 0 in tch else 0})")
    sbar()
    for k in range(1, len(bars) + 1):
        if k != 6:
            touch(k)
        if 2 <= k <= 4:
            for u in range(6 * (k - 2), 6 * (k - 1)):
                A(f"s_add_u32 s47, s38, {1024*u}")
                A(f"buffer_store_dword v12, v3, s[20:23], s47 offen sc1")
        if k == 6:
            A("""
    s_waitcnt vmcnt(0)
    s_mov_b64 exec, 1
    buffer_atomic_add v6, v5, s[60:63], 0 offen sc1
    s_mov_b64 exec, -1
    """)
            touch(6)
            for u in range(6):
                A(f"s_mov_b32 s47, {8192*u}\nbuffer_load_dword v16, v4, s[32:35], s47 offen")
        if k == kpoll - 1:
            A("buffer_load_dword v17, v5, s[60:63], 0 offen sc1")
        if k == kpoll:
            A("""
    s_mov_b32 s58, 0
    s_branch L_hchk
L_hpoll:
    buffer_load_dword v17, v5, s[60:63], 0 offen sc1
L_hchk:
    s_add_u32 s58, s58, 1
    s_waitcnt vmcnt(0)
    v_readfirstlane_b32 s47, v17
    s_cmp_gt_u32 s58, 20000
    s_cbranch_scc1 L_hgo
    s_cmp_lt_u32 s47, 9
    s_cbranch_scc1 L_hpoll
L_hgo:
    """)
        sbar()
        if k == kfree:
            for u in range(41):
                A(f"""
    s_mov_b32 m0, {WO_BASE + 1024*u}
    s_mov_b32 s47, {1024*u}
    buffer_load_dwordx4 v3, s[32:35], s47 offen lds
    """)
    assert 7 < kpoll
    A("s_waitcnt vmcnt(0)")
    sbar()
    sdump(0x8200000)
    A("""
L_end:
    s_endpgm
.fill 32, 4, 0xbf800000
L_textend:
    """)
    txt = A.text() + f"""
.section .rodata,"a"
.p2align 6
.amdhsa_kernel {NAME}
  .amdhsa_next_free_vgpr {nv}
  .amdhsa_next_free_sgpr 100
  .amdhsa_accum_offset {(nv+3)//4*4}
  .amdhsa_group_segment_fixed_size 0
  .amdhsa_kernarg_size 48
  .amdhsa_user_sgpr_count 2
  .amdhsa_user_sgpr_kernarg_segment_ptr 1
  .amdhsa_system_sgpr_workgroup_id_x 1
.end_amdhsa_kernel
"""
    info = dict(nslots=nslots, nv=nv, bars=bars, need=need, free=free_at, kpoll=kpoll, kfree=kfree, kpub=kpub,
                npre=len(gap_reads[-1]))
    return txt, info


if __name__ == "__main__":
    cfg = Cfg()
    for a in sys.argv[2:]:
        k, v = a.split("=")
        cur = getattr(cfg, k)
        setattr(cfg, k, v.replace("+", " ") if isinstance(cur, str) else type(cur)(int(v)))
    txt, info = build(cfg)
    open(sys.argv[1], "w").write(txt)
    print(info)
```

```python
import sys, struct

NAME = "standalone__autoregressive_conv_wavenet__speech_kernel"
T, D, KT = 4000, 144, 15
XB = T * D * 2
WB = KT * D * 2 * D * 2
WOB = D * D * 2
INBOX = 18432
LOG2E = 1.4426950408889634
SENT = 0x44004400


def f2u(f):
    return struct.unpack("<I", struct.pack("<f", f))[0]


class Asm:
    def __init__(self):
        self.l = []

    def __call__(self, s):
        for x in s.strip("\n").split("\n"):
            x = x.strip()
            if not x:
                continue
            self.l.append(x if x.endswith(":") or x.startswith(".") or x.startswith(";") else "    " + x)

    def text(self):
        return "\n".join(self.l) + "\n"


def vr(b, n=4):
    return f"v[{b}:{b+n-1}]"


class Cfg:
    ring = 32
    lead = 12
    bars = "18 56 110 164 218 272 326 380 434 470"
    depth = 14
    depth0 = 8
    slope = 7
    burst = 0
    chain = 2
    gate = 15
    htch = "3:4 3:2 4:3"
    lin = 1
    order = "0 1 4 2"
    t0 = "a"
    script = "10/16/22/28/34/42/50/57/64/68"
    pk0 = 6
    pk1 = 7
    pflag = "sc1"
    wsoff = 0
    bissue = 0
    pka = 9
    kchk = 7
    pf = 0
    pfflag = ""
    sig = 1
    hmid = 0
    fst = 0
    cpois = ""
    cdrain = 0
    swapk = 1
    chk2 = 2
    thin = 0
    tmx = 0
    cap1 = 2
    cf = 0
    rsim = 0
    nw = 8
    x4 = 1
    rsk = 0
    vhs = 1
    xexit = 2
    ntall = ""
    tflag = ""
    xwarm = ""
    xst = 0
    ackst = 0
    cpf = 0
    wok = 4
    align = 2
    warm = "0:1"
    rot = 1
    nt0 = "nt"
    t0n = 64
    wofirst = 5
    dbl = 0
    wofirst2 = 5
    wof = "5 5 5 5 5"
    drain = 0
    outflag = "sc1"
    prio = 0
    stamps = False
    amp = -1
    poison = 1
    hs = 1


def build(cfg):
    A = Asm()
    RING = cfg.ring
    XBASE = RING * 2048
    LDS = XBASE + 90 * 1024
    WO_BASE = 0
    ZX_BASE = XBASE
    OST = XBASE + 10240
    S, AMP = cfg.stamps, cfg.amp

    st = []
    for cc in [int(x) for x in cfg.order.split()] + [3]:
        kind = "c" if cc < 4 else "r"
        for i in (range(15) if kind == "c" else range(0, 15, 2)):
            st.append((kind, cc, i))
    NS = len(st)
    ops = []
    nsm = NS - 15
    for s0 in range(0, nsm, cfg.chain):
        for j in range(8, -1, -1):
            for s in range(s0, min(s0 + cfg.chain, nsm)):
                ops.append((j, s, (st[s][1], j - st[s][2])))
    tm = len(ops)
    for j in range(8, -1, -1):
        for i in range(15):
            ops.append((j, nsm + i, (3, j - i)))
    NO = len(ops)

    def w_soff(step, u):
        kind, cc, i = step
        if kind == "c":
            return (i * 144 + 32 * cc + 16 * u) * 576
        return ((i + u) * 144 + 128) * 576

    ACC = 8
    vSt8 = 7
    vX, vY, vY2, vW, vSt, vB, vG, vL, vL2, vZ = 44, 45, 46, 47, 48, 49, 50, 51, 52, 53
    vOa, vOb, vOc, vOd, vOut, vOut8 = 54, 55, 56, 57, 58, 59
    TMP = 60
    vXS = 76
    vLR, vLG = 84, 87
    vPo = 92
    vRS = 92
    POOL = 96 if cfg.cpois or cfg.rsim else 92
    first, last = {}, {}
    for n, (j, s, xt) in enumerate(ops):
        for tag in (("w", s), ("x",) + xt):
            first.setdefault(tag, n)
            last[tag] = n
    cap = [1] * NO
    for g in range(tm - cfg.burst, tm + 15):
        cap[g] = 2 if g < tm else cfg.cap1
    for g in range(tm + 15, NO):
        cap[g] = 1 if cfg.tmx and (g - tm) % 15 == 0 else 0
    if cfg.thin:
        for g in range(tm - 120, tm):
            if g % cfg.thin == 0:
                cap[g] = 0
    load = [0] * NO
    place = {}
    for tag in sorted(first, key=lambda t: -first[t]):
        gs = []
        g = first[tag] - cfg.lead
        for k in range(2 if tag[0] == "w" else 1):
            while g >= 0 and load[g] >= cap[g]:
                g -= 1
            if g >= 0:
                load[g] += 1
            gs.append(max(g, -1))
        place[tag] = sorted(gs)
    slot, busy = {}, []
    for tag in sorted(place, key=lambda t: (place[t][0], first[t])):
        for k in range(len(busy)):
            if busy[k] <= place[tag][0]:
                break
        else:
            k = len(busy)
            busy.append(0)
        busy[k] = last[tag]
        slot[tag] = POOL + 4 * k
    nv = max(POOL + 4 * len(busy), POOL + 148)
    assert nv <= 256, nv

    def rd_text(tag):
        b = slot[tag]
        if tag[0] == "w":
            o = (tag[1] % RING) * 2048
            return [f"ds_read_b64_tr_b16 {vr(b,2)}, v{vW} offset:{o}",
                    f"ds_read_b64_tr_b16 {vr(b+2,2)}, v{vW} offset:{o+256}"]
        _, cc, e = tag
        off = (28 + 2 * e) * 288
        if cc < 4:
            return [f"ds_read_b128 {vr(b)}, v{vXS + (14 + e) % 8} offset:{off + 64*cc}"]
        return [f"ds_read_b128 {vr(b)}, v{vY2 if e == -14 else vY} offset:{off}"]

    gap_reads = {g: [] for g in range(-1, NO)}
    for tag in sorted(place, key=lambda t: (first[t], t[0] == "w")):
        for g, tx in zip(place[tag], rd_text(tag)):
            gap_reads[g].append((tag, tx))
    bar_gate = tm + 15 + cfg.gate
    bars = sorted(set([int(x) for x in cfg.bars.split()] + [bar_gate]))
    NB = len(bars)
    edges = [-1] + bars + [NO]
    need = [max(t[1] for t in place if t[0] == "w" and place[t][0] < edges[k + 1]) + 1 for k in range(NB + 1)]

    warm_ops = [100, 230, 360, 480, 560]
    NWARM = len(warm_ops) + 2

    def warm(k):
        if any(a.endswith(f":{k}") for a in cfg.warm.split() + cfg.xwarm.split()):
            A(f"L_warm{k}:\ns_cbranch_execz L_warmed{k}")

    def stamp(k):
        if S:
            A(f"s_memtime s[{82+2*k}:{83+2*k}]")
            if k in (1, 2):
                A(f"s_memrealtime s[{12+2*k}:{13+2*k}]")
        if AMP == k:
            A("s_memrealtime s[96:97]")

    nb = [0]

    def sbar():
        if S:
            A(f"s_memtime s[70:71]\ns_waitcnt lgkmcnt(0)\ns_sub_u32 s70, s70, s80\nv_writelane_b32 v20, s70, {2*nb[0]}")
        A("s_barrier")
        if S:
            A(f"s_memtime s[70:71]\ns_waitcnt lgkmcnt(0)\ns_sub_u32 s70, s70, s80\nv_writelane_b32 v20, s70, {2*nb[0]+1}")
        nb[0] += 1

    def sdump(off):
        if S:
            A(f"""
    s_mov_b32 s22, 0x10000000
    s_lshl_b32 s55, s2, 8
    s_add_u32 s55, s55, {off}
    v_lshlrev_b32 v21, 2, v2
    buffer_store_dword v20, v21, s[20:23], s55 offen
    """)
        nb[0] = 0

    def srd(d, lo, hi, size, add=None):
        if add is None:
            A(f"s_mov_b32 s{d}, s{lo}\ns_and_b32 s{d+1}, s{hi}, 0xffff")
        else:
            A(f"s_add_u32 s{d}, s{lo}, {add}\ns_addc_u32 s{d+1}, s{hi}, 0\ns_and_b32 s{d+1}, s{d+1}, 0xffff")
        A(f"s_mov_b32 s{d+2}, {size}\ns_mov_b32 s{d+3}, 0x20000")

    srd_x = lambda: srd(12, 4, 5, XB, "s39")
    srd_w = lambda: srd(16, 6, 7, WB)
    srd_ws = lambda: srd(20, 26, 27, 252 * INBOX + 28 * 128, cfg.wsoff or None)
    srd_out = lambda: srd(28, 10, 11, XB, "s39")
    srd_wo = lambda: srd(32, 8, 9, WOB)

    A(f"""; WaveNet gated dilated conv (K=15, dilation 2) + output projection, one launch.  Generated by gen/gen3.py.
;
; @launch grid=(256,1,1) block=({64*cfg.nw},1,1) lds={LDS}
.amdgcn_target "amdgcn-amd-amdhsa--gfx950"
.text
.globl {NAME}
{("", ".p2align 12" + chr(10) + ".fill 832, 4, 0xbf800000", ".p2align 12")[cfg.align]}
.p2align 8
.type {NAME},@function
{NAME}:
    s_load_dwordx8 s[4:11], s[0:1], 0
    s_load_dwordx4 s[24:27], s[0:1], 32
    """)
    if S:
        A("s_memtime s[80:81]")
    if S or AMP >= 0:
        A("s_memrealtime s[94:95]")
    A(f"""
    s_cmp_ge_u32 s2, 256
    s_cbranch_scc1 L_end
    s_and_b32 s42, s2, 7
    s_lshr_b32 s79, s2, 3
    s_mul_i32 s44, s42, 27
    s_add_u32 s44, s44, s79
    s_sub_u32 s36, s79, 27
    s_and_b32 s37, s42, 1
    s_mul_i32 s45, s37, 5
    s_add_u32 s45, s45, s36
    s_cmp_ge_u32 s79, 27
    s_cselect_b32 s46, s45, 0
    s_cmp_ge_u32 s46, 9
    s_cbranch_scc1 {"L_spare" if cfg.pf else "L_end"}
    s_lshr_b32 s46, s42, 1
    s_mul_i32 s46, s46, 9
    s_add_u32 s45, s45, s46
    s_add_u32 s45, s45, 216
    s_cmp_ge_u32 s79, 27
    s_cselect_b32 s44, s45, s44
    s_mul_hi_u32 s40, s44, 0x1c71c71d ; group
    s_mul_i32 s45, s40, 9
    s_sub_u32 s41, s44, s45           ; member
    v_lshrrev_b32 v1, 6, v0
    v_and_b32 v2, 63, v0              ; lane
    s_cmp_ge_u32 s40, 14
    v_readfirstlane_b32 s3, v1
    s_cselect_b32 s42, 1, 0           ; batch
    s_mul_i32 s43, s42, 14
    s_sub_u32 s43, s40, s43
    s_mul_i32 s39, s42, {XB}
    s_mul_i32 s45, s43, {288*288}
    s_sub_u32 s45, s45, {28*288}
    s_mul_i32 s38, s44, {INBOX}
    s_cmp_eq_u32 s3, 4
    s_cbranch_scc1 L_loader
    {"s_cmp_ge_u32 s3, 6" + chr(10) + "s_cbranch_scc1 L_extra" if cfg.nw > 6 else ""}
    s_cmp_eq_u32 s3, 5
    s_cselect_b32 s46, {4 if cfg.cf else 8}, s3
    s_mov_b32 s47, {(2**32 + 17)//18}
    """)
    if cfg.x4:
        A("s_cmp_eq_u32 s3, 5\ns_cbranch_scc1 L_nox")
    for c in range(3 if cfg.x4 else 2):
        A(f"""
    {"s_mov_b32 s48, 8" if c == 2 else "s_add_u32 s48, s46, %d" % ((5 if cfg.cf else 4)*c)}
    s_lshl_b32 s48, s48, 6
    v_add_u32 v3, s48, v2
    v_mul_hi_u32 v4, s47, v3          ; row
    v_mul_u32_u24 v5, 18, v4
    v_sub_u32 v5, v3, v5
    v_lshrrev_b32 v4, 2, v4
    v_and_b32 v4, 2, v4
    v_xor_b32 v4, v4, v5
    v_cmp_gt_u32 vcc, 16, v5
    v_sub_u32 v3, v3, v5
    s_nop 0
    v_cndmask_b32 v4, v5, v4, vcc
    v_add_u32 v3, v3, v4
    v_lshl_add_u32 v{(8, 9, 12)[c]}, v3, 4, s45
    """)
    A(f"""
    s_lshl_b32 s46, s46, 10
    s_add_u32 s46, s46, {XBASE}
    s_lshl_b32 s48, s36, 1
    s_cmp_ge_u32 s40, 24
    s_cselect_b32 s48, s48, s41
    s_mul_i32 s48, s48, {9216 if cfg.rot else 0}
    s_mov_b32 s49, 9
    {"L_nox:" if cfg.x4 else ""}
    s_waitcnt lgkmcnt(0)
    """)
    srd_x()
    stamp(0)
    A("s_cmp_eq_u32 s3, 5\ns_cbranch_scc1 L_helper")

    def xdma(nclass, lab, middle=None):
        def blk(flag):
            for c in range(nclass):
                A(f"""
    {"s_add_u32 m0, s46, s48" if c == 0 else "s_add_u32 m0, m0, 4096"}
    v_add_u32 v{10+c}, s48, v{8+c}
    buffer_load_dwordx4 v{10+c}, s[12:15], 0 offen {flag} lds
    """)
            if cfg.x4:
                t = "b" if blk.done else "a"
                blk.done = True
                A(f"""
    {"s_cmp_eq_u32 s3, 3" if t == "a" else "s_and_b32 s47, s49, 3" + chr(10) + "s_cmp_eq_u32 s47, s3"}
    s_cbranch_scc0 L_x8{t}
    s_add_u32 m0, s48, {XBASE + 8192}
    v_add_u32 v13, s48, v12
    buffer_load_dwordx4 v13, s[12:15], 0 offen {flag} lds
L_x8{t}:
    """)
        blk.done = False
        blk(cfg.nt0)
        if middle:
            middle()
        A(f"""
{lab}:
    s_add_u32 s48, s48, 9216
    s_cmp_ge_u32 s48, 92160
    s_cselect_b32 s48, 0, s48
    """)
        blk(cfg.ntall)
        if cfg.xst and nclass == 2:
            A("s_memtime s[60:61]\ns_waitcnt lgkmcnt(0)\ns_sub_u32 s60, s60, s80\ns_mov_b32 m0, s49\ns_nop 0\nv_writelane_b32 v40, s60, m0")
        A(f"s_sub_u32 s49, s49, 1\ns_cmp_lg_u32 s49, 0\ns_cbranch_scc1 {lab}")
        if cfg.xst and nclass == 2:
            for k, n in enumerate((16, 12, 8, 4, 0)):
                A(f"s_waitcnt vmcnt({n})\ns_memtime s[60:61]\ns_waitcnt lgkmcnt(0)\ns_sub_u32 s60, s60, s80\nv_writelane_b32 v40, s60, {10+k}")
            srd_ws()
            A("""
    s_mov_b32 s22, 0x10000000
    s_lshl_b32 s55, s2, 8
    s_add_u32 s55, s55, 0x8300000
    v_lshlrev_b32 v21, 2, v2
    s_cmp_eq_u32 s3, 0
    s_cbranch_scc0 L_xst
    buffer_store_dword v40, v21, s[20:23], s55 offen
L_xst:
    """)

    if cfg.cf:
        A("s_mov_b32 s62, s48")
        xdma(1, "L_xa")
        A(f"s_add_u32 m0, s46, s62\ns_add_u32 m0, m0, 5120\nv_add_u32 v11, s62, v9\nbuffer_load_dwordx4 v11, s[12:15], 0 offen {cfg.nt0} lds")
    else:
        xdma(2, "L_xa")
    if cfg.bissue:
        A("s_barrier")
    A("s_branch L_compute")
    def line_addr(dst, base, n, per_tap, lane=2):
        A(f"""
    s_mul_i32 s47, s79, {n}
    s_add_u32 s47, s47, {base}
    v_add_u32 v{dst}, s47, v{lane}
    s_mov_b32 s47, {(2**32 + per_tap - 1)//per_tap}
    v_mul_hi_u32 v18, s47, v{dst}
    v_mul_u32_u24 v18, {82944 - per_tap*128}, v18
    v_lshl_add_u32 v{dst}, v{dst}, 7, v18
    """)

    def set_exec(n):
        m = (1 << n) - 1
        A(f"s_mov_b32 exec_lo, {m & 0xffffffff}\ns_mov_b32 exec_hi, {m >> 32}")

    A(f"""
L_loader:
    """)

    def text_prefetch():
        A(f"""
    s_getpc_b64 s[60:61]
L_pc:
    s_sub_u32 s60, s60, L_pc-{NAME}
    s_subb_u32 s61, s61, 0
    s_mul_i32 s62, s79, (L_textend-{NAME}+4095)/4096
    v_add_u32 v5, s62, v2
    v_lshlrev_b32 v5, 7, v5
    v_min_u32 v5, L_textend-{NAME}-128, v5
    s_mov_b32 exec_lo, (1<<((L_textend-{NAME}+4095)/4096))-1
    s_mov_b32 exec_hi, 0
    global_load_dword v7, v5, s[60:61]
    s_mov_b64 exec, -1
    """)

    if cfg.cpf == 0:
        text_prefetch()

    def touch_addr(used):
        if "a" in used:
            line_addr(12, 0, 36, 144)
        if "b" in used:
            line_addr(17, 1152, 32, 144)
        if used & set("0123"):
            line_addr(13, 0, 68, 144)
            A("v_add_u32 v15, 64, v2")
            line_addr(15, 0, 68, 144, 15)
        if "4" in used:
            line_addr(14, 0, 34, 72)

    touch_addr(set(cfg.t0.split()) | {a[1:] for e in cfg.script.split("/") for a in e.split(",") if a[:1] == "t"})
    A(f"""
    v_lshrrev_b32 v3, 2, v2
    v_mul_u32_u24 v3, 576, v3
    v_lshrrev_b32 v4, 5, v2
    v_lshlrev_b32 v4, 1, v4
    v_and_b32 v5, 3, v2
    v_xor_b32 v4, v4, v5
    v_lshl_add_u32 v3, v4, 4, v3
    v_lshlrev_b32 v4, 7, v2
    s_lshl_b32 s46, s41, 6
    s_mul_i32 s48, s79, {11*128}
    s_add_u32 s49, s45, {28*288}
    s_waitcnt lgkmcnt(0)
    """)
    srd_w()
    vq = []

    def touch(c):
        c = int(c) if c.isdigit() else c
        for (r, n, o) in ([(12, 36, 0)] if c == "a" else [(17, 32, 0)] if c == "b" else
                          [(13, 64, 18432 * c), (15, 4, 18432 * c)] if c < 4 else [(14, 34, 128 * 576)]):
            if n < 64:
                set_exec(n)
            A(f"s_mov_b32 s47, {o}\nbuffer_load_dword v16, v{r}, s[16:19], s47 offen")
            vq.append(-1)
            if n < 64:
                A("s_mov_b64 exec, -1")

    for c in cfg.t0.split():
        touch(c)
    if cfg.cpf == 1:
        text_prefetch()

    def misc_touch():
        A(f"v_lshlrev_b32 v4, 7, v2\ns_mul_i32 s48, s79, {11*128}\ns_add_u32 s49, s45, {28*288}")
        srd_wo()
        set_exec(11)
        A("buffer_load_dword v7, v4, s[32:35], s48 offen")
        srd_out()
        set_exec(1)
        A("buffer_load_dword v7, v4, s[28:31], s49 offen\ns_mov_b64 exec, -1")

    if cfg.wok == 0:
        misc_touch()
    if S:
        srd_ws()
    A("s_branch L_loader2")
    A("L_helper:")
    srd_ws()
    def reset():
        A(f"""
    s_cmp_eq_u32 s41, 0
    s_cbranch_scc0 L_nolead
    s_lshl_b32 s47, s40, 7
    s_add_u32 s47, s47, {252*INBOX}
    v_mov_b32 v5, 0
    s_mov_b64 exec, 1
    buffer_store_dword v5, v5, s[20:23], s47 offen sc1
    s_mov_b64 exec, -1
L_nolead:
    """)

    if cfg.hs and not cfg.rsk:
        reset()
    wk = [tuple(map(int, a.split(":"))) for a in cfg.warm.split()]

    def visit(k):
        for kk, w in wk:
            if kk == k:
                A(f"s_mov_b64 exec, 0\ns_branch L_warm{w}\nL_warmed{w}:\ns_mov_b64 exec, -1")

    htch = {}

    def helper_setup():
        srd_w()
        srd_wo()
        for a in cfg.htch.split():
            htch.setdefault(int(a.split(":")[0]), []).append(a.split(":")[1])
        touch_addr({c for v in htch.values() for c in v})
        A(f"""
    v_lshlrev_b32 v3, 4, v2
    v_mov_b32 v24, {SENT}
    v_mov_b32 v25, v24
    v_mov_b32 v26, v24
    v_mov_b32 v27, v24
    s_lshl_b32 s47, s40, 2
    s_add_u32 s52, s24, s47
    s_addc_u32 s53, s25, 0
    s_lshl_b32 s47, s40, 7
    s_add_u32 s47, s47, {252*INBOX + cfg.wsoff}
    s_add_u32 s54, s26, s47
    s_addc_u32 s55, s27, 0
        """)
        visit(0)

    if cfg.x4:
        helper_setup()
    elif cfg.hmid:
        xdma(1, "L_xb", helper_setup)
    else:
        xdma(1, "L_xb")
        helper_setup()
    if cfg.bissue:
        A("s_barrier")

    def signal():
        A("s_cmp_eq_u32 s41, 0\ns_cbranch_scc0 L_nolead2")
        if cfg.sig >= 2:
            A(f"s_waitcnt vmcnt({0 if cfg.x4 else 10})")
        elif cfg.rsk:
            A("s_waitcnt vmcnt(0)")
            assert not any(cfg.rsk <= k < cfg.rsk + 2 for k in htch)
        if cfg.sig in (0, 3):
            A("s_mov_b32 s50, 1\ns_atomic_add s50, s[52:53], 0")
        else:
            A("""
    v_mov_b32 v5, 0
    v_mov_b32 v6, 1
    s_mov_b64 exec, 1
    global_store_dword v5, v6, s[52:53] sc1
    s_mov_b64 exec, -1
    """)
        if cfg.sig == 2:
            A("s_waitcnt vmcnt(1)\ns_branch L_lead3")
        A("L_nolead2:")

    if cfg.hs and cfg.sig >= 2:
        signal()
    A("s_waitcnt vmcnt(0)")
    if cfg.hs and cfg.sig == 2:
        A("L_lead3:")
    sbar()
    hb = nb[0]
    nb[0] = 0
    A("s_branch L_helper2")
    A("L_compute:")
    srd_ws()
    srd_out()
    A(f"""
    s_and_b32 s50, s3, 1              ; p
    s_lshr_b32 s51, s3, 1
    v_and_b32 v4, 15, v2              ; r
    v_lshrrev_b32 v5, 4, v2           ; q
    v_mul_u32_u24 v1, 5184, v4
    s_mul_i32 s52, s50, 288
    s_add_u32 s52, s52, {XBASE}
    v_add_u32 v{vX}, s52, v1
    v_and_b32 v6, 1, v5
    v_lshlrev_b32 v6, 4, v6
    v_add_u32 v6, 256, v6
    v_add_u32 v{vY2}, v{vX}, v6
    v_lshrrev_b32 v6, 1, v5
    v_mul_u32_u24 v6, 576, v6
    v_sub_u32 v{vY}, v{vY2}, v6
    v_mul_u32_u24 v3, 18, v4
    v_add_u32 v3, s50, v3
    """)
    for m in range(8):
        A(f"""
    v_add_u32 v6, {2*m}, v3
    v_lshrrev_b32 v6, 2, v6
    v_and_b32 v6, 2, v6
    v_xor_b32 v6, v6, v5
    v_lshl_add_u32 v{vXS+m}, v6, 4, v{vX}
    """)
    A(f"""
    v_lshlrev_b32 v{vW}, 9, v5
    v_bfe_u32 v6, v2, 2, 2
    v_lshl_add_u32 v{vW}, v6, 6, v{vW}
    v_and_b32 v6, 1, v5
    v_xor_b32 v6, s51, v6
    v_lshl_add_u32 v{vW}, v6, 5, v{vW}
    v_and_b32 v6, 3, v2
    v_lshl_add_u32 v{vW}, v6, 3, v{vW}
    v_and_b32 v6, 31, v2
    v_lshlrev_b32 v{vL2}, 4, v6
    v_lshrrev_b32 v6, 5, v2
    v_mul_u32_u24 v3, {INBOX}, v6
    v_add_u32 v{vSt}, v{vL2}, v3
    v_lshl_add_u32 v{vL2}, v6, 3, v{vL2}
    v_lshlrev_b32 v6, 31, v6
    v_or_b32 v{vSt8}, v{vSt}, v6
    v_lshlrev_b32 v{vL}, 4, v2
    s_lshl_b32 s53, s41, 1
    s_add_u32 s53, s53, s51
    s_mul_i32 s54, s40, {9*INBOX}
    s_mul_i32 s55, s50, 9216
    s_add_u32 s54, s54, s55
    s_add_u32 s38, s38, s55
    s_lshl_b32 s55, s53, 9
    s_add_u32 s72, s54, s55
    s_add_u32 s73, s72, {2*INBOX}
    s_add_u32 s74, s72, {4*INBOX}
    s_add_u32 s75, s72, {6*INBOX}
    s_add_u32 s76, s72, {8*INBOX}
    s_add_u32 s39, s38, 4608
    s_add_u32 s77, s38, 4096
    s_add_u32 s78, s39, 4096
    s_cmp_lt_u32 s53, 9
    s_mov_b32 s56, {f2u(-LOG2E)}
    s_cselect_b32 s56, {f2u(-2*LOG2E)}, s56
    s_cselect_b32 s57, 2.0, 1.0
    s_cselect_b32 s58, -1.0, 0
    v_mov_b32 v{vB}, s57
    v_mov_b32 v{vG}, s58
    s_mov_b32 s57, {SENT}
    s_mov_b32 s58, 0
    s_lshr_b32 s59, s41, 1
    s_lshl_b32 s59, s59, 2
    s_lshr_b32 s59, {sum((int(x) + 1) << (4 * k) for k, x in enumerate(cfg.wof.split()))}, s59
    s_and_b32 s59, s59, 15
    v_and_b32 v6, 1, v5
    v_lshlrev_b32 v6, 2, v6
    v_bfe_u32 v3, v2, 2, 2
    v_add_u32 v6, v6, v3              ; 4*(q&1) + r'
    v_lshrrev_b32 v3, 1, v5
    v_lshl_add_u32 v{vOa}, v3, 4, v6
    v_lshl_add_u32 v{vOb}, v3, 3, v6
    v_mul_u32_u24 v{vOa}, 288, v{vOa}
    v_mul_u32_u24 v{vOb}, 288, v{vOb}
    v_and_b32 v3, 3, v2
    v_lshl_add_u32 v{vOc}, v3, 3, v{vOa}
    v_lshl_add_u32 v{vOd}, v3, 3, v{vOb}
    v_lshl_add_u32 v{vOa}, v3, 4, v{vOa}
    v_lshl_add_u32 v{vOb}, v3, 4, v{vOb}
    s_lshl_b32 s52, s51, 7
    v_add_u32 v{vOa}, s52, v{vOa}
    v_add_u32 v{vOb}, s52, v{vOb}
    s_mul_i32 s53, s43, 288
    s_add_u32 s53, s53, s50
    s_lshl_b32 s55, s41, 1
    s_add_u32 s53, s53, s55
    s_mul_i32 s53, s53, 288
    v_add_u32 v6, s53, v1
    v_lshl_add_u32 v{vOut8}, v5, 3, v6
    v_lshl_add_u32 v{vOut}, v5, 4, v6
    v_add_u32 v{vOut}, s52, v{vOut}
    s_mul_i32 s55, s50, 5120
    s_add_u32 s55, s55, {ZX_BASE}
    v_add_u32 v{vZ}, s55, v{vL}
    """)
    if cfg.lin:
        A(f"""
    s_mul_i32 s55, s50, 288
    s_sub_u32 s53, s53, s55
    s_add_u32 s55, s55, {OST}
    v_mul_u32_u24 v6, 592, v4
    v_add_u32 v6, s55, v6
    v_lshl_add_u32 v{vOut8}, v5, 3, v6
    v_lshl_add_u32 v{vOut}, v5, 4, v6
    v_add_u32 v{vOut}, s52, v{vOut}
    s_mov_b32 s47, {(2**32 + 35)//36}
    """)
        for k in range(3):
            A(f"""
    v_add_u32 v3, {256*k}, v0
    v_mul_hi_u32 v6, s47, v3
    v_lshlrev_b32 v3, 4, v3
    v_lshl_add_u32 v{vLR+k}, v6, 4, v3
    v_add_u32 v{vLR+k}, {OST}, v{vLR+k}
    v_mul_u32_u24 v6, {5184-576}, v6
    v_add3_u32 v{vLG+k}, v6, v3, s53
    """)
    if cfg.rsim:
        for k in range(4):
            A(f"""
    v_lshrrev_b32 v6, 5, v2
    v_add_u32 v6, s41, v6
    v_add_u32 v6, {2*k+1}, v6
    v_subrev_u32 v3, 9, v6
    v_min_u32 v6, v6, v3
    v_mul_u32_u24 v6, {INBOX}, v6
    v_and_b32 v3, 31, v2
    v_lshl_add_u32 v{vRS+k}, v3, 4, v6
    """)
    cpois = [int(x) for x in cfg.cpois.split()]
    if cpois:
        A(f"""
    v_mov_b32 v{vPo}, {SENT}
    v_mov_b32 v{vPo+1}, v{vPo}
    v_mov_b32 v{vPo+2}, v{vPo}
    v_mov_b32 v{vPo+3}, v{vPo}
    s_mul_i32 s60, s44, {INBOX}
    s_lshl_b32 s55, s3, 12
    s_add_u32 s60, s60, s55           ; pieces 4w .. 4w+3
    s_mul_i32 s61, s44, {INBOX}
    s_lshl_b32 s55, s3, 10
    s_add_u32 s61, s61, s55
    s_add_u32 s61, s61, 16384
    s_cmp_lt_u32 s3, 2
    s_cselect_b32 s61, s61, 0x7ff00000
    """)
    if cfg.prio:
        A(f"s_setprio {cfg.prio}")
    A(f"s_waitcnt vmcnt({1 if cfg.cf else 0})\ns_barrier")
    stamp(1)

    def act_instrs(j, dst):
        a = ACC + 4 * j
        o = [f"v_mul_f32 v{a+k}, s56, v{a+k}" for k in range(4)]
        o += [f"v_exp_f32 v{a+k}, v{a+k}" for k in range(4)]
        o += [f"v_add_f32 v{a+k}, 1.0, v{a+k}" for k in range(4)]
        o += [f"v_rcp_f32 v{a+k}, v{a+k}" for k in range(4)]
        o += [f"v_fma_f32 v{a+k}, v{a+k}, v{vB}, v{vG}" for k in range(4)]
        o += [f"v_cvt_pk_f16_f32 v{dst}, v{a}, v{a+1}", f"v_cvt_pk_f16_f32 v{dst+1}, v{a+2}, v{a+3}"]
        return o

    def tile_tail(j):
        t = TMP + 4 * ((j // 2) % 4)
        if cfg.rsim:
            t = TMP + 4 * (((j + 1) // 2) % 4)
            if j == 0:
                return act_instrs(0, t) + [f"ds_write_b64 v{vZ}, {vr(t,2)} offset:12288", "s_waitcnt lgkmcnt(0)"]
            if j % 2 == 0:
                return act_instrs(j, t + 2)
            return act_instrs(j, t) + ["|", f"v_permlane32_swap_b32 v{t}, v{t+2}", f"v_permlane32_swap_b32 v{t+1}, v{t+3}",
                                       f"buffer_store_dwordx4 {vr(t)}, v{vRS + j//2}, s[20:23], s72 offen sc1"]
        if j == 8:
            o = act_instrs(8, t) + [f"v_mov_b32 v{t+2}, v{t}", f"v_mov_b32 v{t+3}, v{t+1}"]
        elif j % 2:
            return act_instrs(j, t + 2)
        else:
            o = act_instrs(j, t)
        o += ["|", f"v_permlane32_swap_b32 v{t}, v{t+2}", f"v_permlane32_swap_b32 v{t+1}, v{t+3}"]
        o.append(f"buffer_store_dwordx4 {vr(t)}, v{vSt8 if j == 8 else vSt}, s[20:23], s{72 + j//2} offen sc1")
        return o

    queue, done, free_at, pend, seen, started = [], set(), {}, [], set(), set()
    for tag, tx in gap_reads[-1]:
        A(tx)
        queue.append(tag)
    for n, (j, s, xt) in enumerate(ops):
        needs = {("w", s), ("x",) + xt} - done
        if n == bar_gate:
            needs |= {t for t in queue if t[0] == "w"}
        if needs:
            idx = max(k for k, tg in enumerate(queue) if tg in needs)
            idx = max(idx, len(queue) - 1 - 15)
            A(f"s_waitcnt lgkmcnt({len(queue) - 1 - idx})")
            done |= set(queue[:idx + 1])
            done -= set(queue[idx + 1:])
            queue = queue[idx + 1:]
        if n in bars:
            hi = -1
            while ("w", hi + 1) in done:
                hi += 1
            free_at[bars.index(n) + 1] = hi
            if cpois and n == cfg.cdrain:
                A("s_waitcnt vmcnt(0)")
            A("s_barrier")
        c = vr(ACC + 4 * j) if j in seen else "0"
        seen.add(j)
        A(f"v_mfma_f32_16x16x32_bf16 {vr(ACC+4*j)}, {vr(slot[('w', s)])}, {vr(slot[('x',)+xt])}, {c}")
        for tag, tx in gap_reads[n]:
            A(tx)
            queue.append(tag)
        if n in warm_ops:
            warm(warm_ops.index(n))
        if n in cpois:
            k = cpois.index(n)
            A(f"buffer_store_dwordx4 {vr(vPo)}, v{vL}, s[20:23], " + (f"s60 offen offset:{1024*k} sc1" if k < 4 else "s61 offen sc1"))
        if n >= tm + 15:
            if (n - tm) % 15 in (0, 1) and not pend and not gap_reads[n]:
                A("s_nop 1")
            if (n - tm) % 15 == (1 if pend else 2) and j + 1 not in started:
                started.add(j + 1)
                pend += tile_tail(j + 1)
            budget = 8
            while pend:
                x = pend[0]
                if x == "|":
                    pend.pop(0)
                    pend.insert(0, pend.pop(3) if len(pend) > 3 else "s_nop 0")
                    break
                cst = 8 if x.startswith(("v_exp", "v_rcp")) else 4
                if cst > budget:
                    break
                budget -= cst
                assert n >= bar_gate or "buffer_store" not in x
                A(pend.pop(0))
    stamp(2)
    ZA = POOL + 92
    ZS = POOL + 112
    ZB = POOL + 124

    def inbox_loads(dh, second=False):
        for k, ks in enumerate([0, 1, 4] if dh == cfg.swapk else [2, 3]):
            ra, rs = (ZB + 8 * k, ZB + 8 * k + 4) if second else (ZA + 4 * ks, ZS + 4 * k)
            if ks < 4:
                A(f"buffer_load_dwordx4 {vr(ra)}, v{vL}, s[20:23], s38 offen offset:{1024*ks} sc1")
                A(f"buffer_load_dwordx4 {vr(rs)}, v{vL}, s[20:23], s39 offen offset:{1024*ks} sc1")
            else:
                A(f"buffer_load_dwordx2 {vr(ra,2)}, v{vL2}, s[20:23], s77 offen sc1")
                A(f"buffer_load_dwordx2 {vr(rs,2)}, v{vL2}, s[20:23], s78 offen sc1")

    wofs = [int(x) for x in cfg.wof.split()]
    nst_left = sum('buffer_store' in x for x in pend + tile_tail(0))
    if -1 in wofs:
        A("s_cmp_eq_u32 s59, 0\ns_cbranch_scc0 L_e2\ns_cmp_eq_u32 s51, 0\ns_cbranch_scc0 L_e1")
        inbox_loads(0)
        A("s_branch L_e2\nL_e1:")
        inbox_loads(1)
        A("L_e2:")
    for x in pend:
        A("s_nop 1" if x == "|" else x)
    A(f"s_nop {max(0, 7 - len(pend))}")
    for x in tile_tail(0):
        A("s_nop 1" if x == "|" else x)

    WO = POOL
    AC2 = ACC

    def wo(tile, ks):
        return WO + 18 * tile + 4 * ks

    def wo_reads(tile):
        for ks in range(5):
            if tile < 4:
                col, ra, rb = 64 * (tile >> 1) + 8 * (tile & 1), vOa, vOb
            else:
                col, ra, rb = 256, vOc, vOd
            if ks < 4:
                o = WO_BASE + 32 * ks * 288 + col
                A(f"ds_read_b64_tr_b16 {vr(wo(tile,ks),2)}, v{ra} offset:{o}")
                A(f"ds_read_b64_tr_b16 {vr(wo(tile,ks)+2,2)}, v{ra} offset:{o+8*288}")
            else:
                A(f"ds_read_b64_tr_b16 {vr(wo(tile,ks),2)}, v{rb} offset:{WO_BASE+128*288+col}")
        A("s_waitcnt lgkmcnt(4)")

    A("s_barrier")
    A("s_cmp_eq_u32 s51, 0\ns_cbranch_scc0 L_z1")

    def zpart(dh):
        own = [0, 1, 4] if dh == cfg.swapk else [2, 3]
        oth = [2, 3] if dh == cfg.swapk else [0, 1, 4]
        nt = 4 + dh
        nl = 2 * len(own)
        if cfg.dbl:
            A(f"s_cmp_ge_u32 s41, {cfg.dbl}\ns_cbranch_scc1 L_single{dh}")
            for tile in range(min(cfg.wofirst2, nt)):
                wo_reads(tile)
            stamp(3)
            inbox_loads(dh)
            for tile in range(min(cfg.wofirst2, nt), nt):
                wo_reads(tile)
            inbox_loads(dh, True)
            A(f"s_waitcnt vmcnt({nl})\ns_branch L_chk{dh}\nL_poll2{dh}:\ns_waitcnt vmcnt(0)")
            for k, ks in enumerate(own):
                for d in range(4 if ks < 4 else 2):
                    A(f"v_mov_b32 v{ZA+4*ks+d}, v{ZB+8*k+d}\nv_mov_b32 v{ZS+4*k+d}, v{ZB+8*k+4+d}")
            inbox_loads(dh, True)
            A(f"s_branch L_chk{dh}\nL_single{dh}:")
        if wofs:
            for tile in range(nt + 1):
                pts = [w for w in set(wofs) if w == tile or (tile == nt and w > nt)]
                for w in pts:
                    A(f"s_cmp_eq_u32 s59, {w + 1}\ns_cbranch_scc0 L_w{dh}_{w}")
                    inbox_loads(dh)
                    A(f"L_w{dh}_{w}:")
                if tile < nt:
                    wo_reads(tile)
            if cfg.ackst:
                A(f"s_waitcnt vmcnt({nl})")
            stamp(3)
            warm(len(warm_ops) + dh)
            if -1 in wofs:
                A(f"s_cmp_eq_u32 s59, 0\ns_cbranch_scc0 L_chk1{dh}\ns_waitcnt vmcnt({nst_left})\ns_branch L_chkx{dh}")
        else:
            for tile in range(min(cfg.wofirst, nt)):
                wo_reads(tile)
            if cfg.drain:
                A(f"s_cmp_ge_u32 s41, {cfg.drain}\ns_cbranch_scc1 L_nodrain{dh}\ns_waitcnt vmcnt(0)\nL_nodrain{dh}:")
            stamp(3)
            inbox_loads(dh)
            for tile in range(min(cfg.wofirst, nt), nt):
                wo_reads(tile)
        A(f"s_branch L_chk1{dh}\nL_poll{dh}:")
        inbox_loads(dh)
        A(f"L_chk1{dh}:")
        if cfg.dbl or -1 in wofs:
            A(f"s_waitcnt vmcnt(0)\nL_chkx{dh}:")
        A(f"L_chk{dh}:\ns_add_u32 s58, s58, 1")

        def mm(ks, firstk):
            o = []
            for tile in range(nt):
                c = "0" if firstk else vr(AC2 + 4 * tile)
                if ks < 4:
                    o.append(f"v_mfma_f32_16x16x32_bf16 {vr(AC2+4*tile)}, {vr(wo(tile,ks))}, {vr(ZA+4*ks)}, {c}")
                else:
                    o.append(f"v_mfma_f32_16x16x16_bf16 {vr(AC2+4*tile)}, {vr(wo(tile,ks),2)}, {vr(ZA+4*ks,2)}, {c}")
            return o

        mq = []
        for k, ks in enumerate(own):
            if not (cfg.dbl or -1 in wofs):
                A(f"s_waitcnt vmcnt({2*(len(own)-1-k)})" + (" lgkmcnt(0)" if k == 0 else ""))
            elif k == 0:
                A("s_waitcnt lgkmcnt(0)")
            nd = 4 if ks < 4 else 2
            if cfg.chk2 == 2:
                o = [f"v_max3_f32 v{TMP+8}, {'0' if k == 0 else 'v%d' % (TMP+8)}, abs(v{ZA+4*ks}), abs(v{ZA+4*ks+nd-1})",
                     f"v_max3_f32 v{TMP+8}, v{TMP+8}, abs(v{ZS+4*k}), abs(v{ZS+4*k+nd-1})"]
                if k == len(own) - 1:
                    o.append(f"v_cmp_eq_u32 vcc, s57, v{TMP+8}")
            else:
                o = [f"v_cmp_eq_u32 s[{60+2*(2*k)}:{61+2*(2*k)}], s57, v{ZA+4*ks}",
                     f"v_cmp_eq_u32 s[{62+2*(2*k)}:{63+2*(2*k)}], s57, v{ZS+4*k}"]
                if cfg.chk2:
                    o += [f"v_cmp_eq_u32 vcc, s57, v{ZA+4*ks+nd-1}", f"s_or_b64 s[{60+4*k}:{61+4*k}], s[{60+4*k}:{61+4*k}], vcc",
                          f"v_cmp_eq_u32 vcc, s57, v{ZS+4*k+nd-1}", f"s_or_b64 s[{62+4*k}:{63+4*k}], s[{62+4*k}:{63+4*k}], vcc"]
            for d in range(nd):
                a, s_ = ZA + 4 * ks + d, ZS + 4 * k + d
                o.append(f"v_fma_mix_f32 v{TMP+2*d}, v{a}, v{s_}, 0 op_sel_hi:[1,1,0]")
                o.append(f"v_fma_mix_f32 v{TMP+2*d+1}, v{a}, v{s_}, 0 op_sel:[1,1,0] op_sel_hi:[1,1,0]")
            for d in range(nd):
                o.append(f"v_cvt_pk_bf16_f32 v{ZA+4*ks+d}, v{TMP+2*d}, v{TMP+2*d+1}")
            o.append(f"ds_write_b128 v{vZ}, {vr(ZA+4*ks)} offset:{1024*ks}" if ks < 4 else
                     f"ds_write_b64 v{vZ}, {vr(ZA+4*ks,2)} offset:{1024*ks}")
            for n_, x in enumerate(o):
                A(x)
                if mq and n_ >= 1:
                    A(mq.pop(0))
            for x in mq:
                A(x)
            mq = mm(ks, k == 0) if k < len(own) - 1 else []
        for k in range(1, 2 * len(own) if cfg.chk2 < 2 else 0):
            A(f"s_or_b64 s[60:61], s[60:61], s[{60+2*k}:{61+2*k}]")
        A(f"""
    {"s_cbranch_vccz" if cfg.chk2 == 2 else "s_cbranch_scc0"} L_go{dh}
    s_cmp_gt_u32 s58, 20000
    s_cbranch_scc1 L_go{dh}
    s_cmp_lt_u32 s41, {cfg.dbl}
    s_cbranch_scc1 L_poll{"2" if cfg.dbl else ""}{dh}
    s_branch L_poll{dh}
L_go{dh}:
    """)
        stamp(4)
        A("s_waitcnt lgkmcnt(0)\ns_barrier")
        if cfg.fst:
            A("s_memtime s[82:83]")
        for ks in oth:
            if ks < 4:
                A(f"ds_read_b128 {vr(ZA+4*ks)}, v{vZ} offset:{1024*ks}")
            else:
                A(f"ds_read_b64 {vr(ZA+4*ks,2)}, v{vZ} offset:{1024*ks}")
        for x in mm(own[-1], False):
            A(x)
        for k, ks in enumerate(oth):
            A(f"s_waitcnt lgkmcnt({len(oth)-1-k})")
            for x in mm(ks, False):
                A(x)
        A("s_nop 4")
        for v in range(2):
            for u in range(2):
                a = AC2 + 4 * (2 * v + u)
                A(f"v_cvt_pk_bf16_f32 v{TMP+4*v+2*u}, v{a}, v{a+1}")
                A(f"v_cvt_pk_bf16_f32 v{TMP+4*v+2*u+1}, v{a+2}, v{a+3}")
            if cfg.lin:
                A(f"ds_write_b128 v{vOut}, {vr(TMP+4*v)} offset:{64*v}")
            else:
                A(f"buffer_store_dwordx4 {vr(TMP+4*v)}, v{vOut}, s[28:31], 0 offen offset:{64*v} {cfg.outflag}")
        if dh == 1:
            A(f"v_cvt_pk_bf16_f32 v{TMP+8}, v{AC2+16}, v{AC2+17}")
            A(f"v_cvt_pk_bf16_f32 v{TMP+9}, v{AC2+18}, v{AC2+19}")
            if cfg.lin:
                A(f"ds_write_b64 v{vOut8}, {vr(TMP+8,2)} offset:256")
            else:
                A(f"buffer_store_dwordx2 {vr(TMP+8,2)}, v{vOut8}, s[28:31], 0 offen offset:256 {cfg.outflag}")
        if cfg.lin:
            A(f"""
    {"s_memtime s[84:85]" if cfg.fst else ""}
    s_waitcnt lgkmcnt(0)
    s_barrier
    {"s_memtime s[86:87]" if cfg.fst else ""}
    ds_read_b128 v[8:11], v{vLR}
    ds_read_b128 v[12:15], v{vLR+1}
    """)
            if dh == 0:
                A(f"""
    s_cmp_eq_u32 s3, 0
    s_cbranch_scc0 L_two
    ds_read_b128 v[16:19], v{vLR+2}
    s_waitcnt lgkmcnt(0)
    buffer_store_dwordx4 v[16:19], v{vLG+2}, s[28:31], 0 offen {cfg.outflag}
L_two:
    """)
            A(f"""
    s_waitcnt lgkmcnt(1)
    buffer_store_dwordx4 v[8:11], v{vLG}, s[28:31], 0 offen {cfg.outflag}
    s_waitcnt lgkmcnt(0)
    buffer_store_dwordx4 v[12:15], v{vLG+1}, s[28:31], 0 offen {cfg.outflag}
    {"s_memtime s[88:89]" if cfg.fst else ""}
    """)

    zpart(0)
    if AMP >= 0:
        A("s_waitcnt vmcnt(0)")
        stamp(5)
        A("""
    s_waitcnt lgkmcnt(0)
    s_sub_u32 s96, s96, s94
    s_lshl_b32 s96, s96, 3
    s_add_u32 s96, s96, 2000
L_amp:
    s_memrealtime s[98:99]
    s_waitcnt lgkmcnt(0)
    s_sub_u32 s98, s98, s94
    s_cmp_lt_u32 s98, s96
    s_cbranch_scc1 L_amp
    """)
    if S:
        A("s_waitcnt vmcnt(0)")
        stamp(5)
        A("""
    s_memrealtime s[96:97]
    s_waitcnt lgkmcnt(0)
    s_cmp_eq_u32 s3, 0
    s_cbranch_scc0 L_end
    """)
        for k in range(6):
            A(f"s_sub_u32 s{82+2*k}, s{82+2*k}, s80\nv_mov_b32 v{8+k}, s{82+2*k}")
        A(f"""
    v_mov_b32 v14, s58
    s_sub_u32 s14, s14, s94
    s_sub_u32 s16, s16, s94
    v_mov_b32 v15, s14
    v_mov_b32 v16, s16
    v_mov_b32 v17, s94
    v_mov_b32 v18, s96
    v_mov_b32 v19, s2
    s_mov_b32 s22, 0x10000000
    s_mul_i32 s55, s2, 48
    s_add_u32 s55, s55, 0x8000000
    v_mov_b32 v20, 0
    s_mov_b64 exec, 1
    buffer_store_dwordx4 v[8:11], v20, s[20:23], s55 offen
    buffer_store_dwordx4 v[12:15], v20, s[20:23], s55 offen offset:16
    buffer_store_dwordx4 v[16:19], v20, s[20:23], s55 offen offset:32
    """)
    A("s_endpgm\nL_z1:")
    zpart(1)
    A("s_endpgm")

    A("L_helper2:")
    nb[0] = hb

    def vop(text):
        A(f"s_mov_b64 exec, 1\n{text}\ns_mov_b64 exec, -1")

    def arrive():
        if cfg.vhs:
            A("s_waitcnt vmcnt(0)\nv_mov_b32 v5, 0\nv_mov_b32 v6, 1")
            vop("global_atomic_add v5, v6, s[54:55] sc1")
        else:
            A("s_waitcnt vmcnt(0)\ns_mov_b32 s50, 1\ns_atomic_add s50, s[54:55], 0")

    def spin(lab, base, cond):
        if cfg.vhs:
            A(f"""
    s_mov_b32 s58, 0
{lab}:
    s_waitcnt vmcnt({cfg.vhs_after.get(lab, 0)})
    v_readfirstlane_b32 s50, v7
    s_add_u32 s58, s58, 1
    {cond}
    s_cbranch_scc1 {lab}_go
    s_cmp_gt_u32 s58, 20000
    s_cbranch_scc1 {lab}_go
    s_mov_b64 exec, 1
    global_load_dword v7, v5, {base} sc1
    s_mov_b64 exec, -1
    s_waitcnt vmcnt(0)
    s_branch {lab}
{lab}_go:
    """)
            return
        A(f"""
    s_mov_b32 s58, 0
{lab}:
    s_waitcnt lgkmcnt(0)
    {cond}
    s_cbranch_scc1 {lab}_go
    s_add_u32 s58, s58, 1
    s_cmp_gt_u32 s58, 20000
    s_cbranch_scc1 {lab}_go
    s_mov_b32 s50, 0
    s_atomic_add s50, {base}, 0 glc
    s_branch {lab}
{lab}_go:
    """)

    for k in range(1, NB + 1):
        if cfg.hs and k == cfg.pka:
            arrive()
        if cfg.hs and cfg.vhs and k == cfg.kchk:
            A("v_mov_b32 v5, 0")
            vop("global_load_dword v7, v5, s[52:53]")
            cfg.vhs_after = {"L_l1": sum(1 for kk in (k, k + 1) if cfg.poison and cfg.pk0 <= kk <= cfg.pk1
                                         for u in range(18 * (kk - cfg.pk0) // (cfg.pk1 - cfg.pk0 + 1), 18 * (kk - cfg.pk0 + 1) // (cfg.pk1 - cfg.pk0 + 1))
                                         if u % (cfg.nw - 5) == 0)}
            assert k not in htch and k + 1 not in htch and cfg.wok not in (k, k + 1)
        if cfg.cf and k in (1, 2):
            for u in range(cfg.cf if k == 1 else 50 - cfg.cf):
                uu = u if k == 1 else u + cfg.cf
                A(f"s_mov_b32 m0, {XBASE + 9216*(uu//5) + 5120 + 1024*min(uu%5, 3)}\ns_add_u32 s47, s45, {9216*(uu//5) + 5120 + 1024*min(uu%5,3)}")
                A(f"v_add_u32 v10, s47, v3\nbuffer_load_dwordx4 v10, s[12:15], 0 offen lds")
        if cfg.cf and k == 3:
            A("s_waitcnt vmcnt(0)")
        if cfg.hs and cfg.rsk and k == cfg.rsk + 2:
            signal()
        visit(k)
        for c in htch.get(k, []):
            touch(c)
        if k == cfg.wok:
            misc_touch()
        if cfg.poison and not cpois and cfg.pk0 <= k <= cfg.pk1:
            np_ = cfg.pk1 - cfg.pk0 + 1
            for u in range(18 * (k - cfg.pk0) // np_, 18 * (k - cfg.pk0 + 1) // np_):
                if u % (cfg.nw - 5):
                    continue
                if cfg.rsim:
                    A(f"s_add_u32 s47, s38, {1024*u}\ns_cmp_eq_u32 s41, {u % 9}\ns_cselect_b32 s47, 0x7ff00000, s47\nbuffer_store_dwordx4 v[24:27], v3, s[20:23], s47 offen sc1")
                    continue
                A(f"s_add_u32 s47, s38, {1024*u}\nbuffer_store_dwordx4 v[24:27], v3, s[20:23], s47 offen {cfg.pflag}")
        if cfg.hs:
            if cfg.rsk and k == cfg.rsk:
                reset()
            if k == 1 and cfg.sig < 2 and not cfg.rsk:
                signal()
            if k == cfg.kchk and not cfg.vhs:
                A("s_waitcnt lgkmcnt(0)\ns_load_dword s50, s[52:53], 0")
            if k == cfg.kchk + 1:
                spin("L_l1", "s[52:53]", "s_cmp_lg_u32 s50, 0")
            if k == NB - 1 and cfg.vhs:
                vop("global_load_dword v7, v5, s[54:55] sc1")
            elif k == NB - 1:
                A("s_waitcnt lgkmcnt(0)\ns_mov_b32 s50, 0\ns_atomic_add s50, s[54:55], 0 glc")
            if k == NB:
                spin("L_l2", "s[54:55]", f"s_cmp_ge_u32 s50, {9*(cfg.nw-5)}")
        sbar()
    assert cfg.kchk + 1 <= cfg.pka < NB - 1 and cfg.pk1 < cfg.pka
    assert not cpois or (len(cpois) == 5 and max(cpois) < cfg.cdrain and bars.index(cfg.cdrain) + 1 < cfg.pka)
    def wo_dma(u0, u1):
        for u in range(u0, u1):
            if (u - u0) % 4 == 0:
                A(f"s_mov_b32 m0, {WO_BASE + 1024*u}\ns_mov_b32 s47, {1024*u}")
            A(f"buffer_load_dwordx4 v3, s[32:35], s47 offen offset:{1024*((u-u0)%4)} lds")

    wo_dma(0, 21)
    A("s_waitcnt vmcnt(0)")
    sbar()
    sdump(0x8200000)
    A("s_endpgm")
    if cfg.nw > 6:
        A(f"""
L_extra:
    """)
        for a in cfg.xwarm.split():
            wv, k = a.split(":")
            A(f"s_cmp_eq_u32 s3, {wv}\ns_cbranch_scc0 L_nov{k}\ns_mov_b64 exec, 0\ns_branch L_warm{k}\nL_warmed{k}:\ns_mov_b64 exec, -1\nL_nov{k}:")
        A("s_waitcnt lgkmcnt(0)")
        srd_ws()
        A(f"""
    v_lshlrev_b32 v3, 4, v2
    v_mov_b32 v24, {SENT}
    v_mov_b32 v25, v24
    v_mov_b32 v26, v24
    v_mov_b32 v27, v24
    s_lshl_b32 s47, s40, 7
    s_add_u32 s47, s47, {252*INBOX + cfg.wsoff}
    s_add_u32 s54, s26, s47
    s_addc_u32 s55, s27, 0
    s_sub_u32 s47, s3, 5
    s_lshl_b32 s47, s47, 10
    s_add_u32 s38, s38, s47
    s_barrier
    """)
        for k in range(1, cfg.pka):
            if cfg.pk0 <= k <= cfg.pk1:
                np_ = cfg.pk1 - cfg.pk0 + 1
                for u in range(18 * (k - cfg.pk0) // np_, 18 * (k - cfg.pk0 + 1) // np_):
                    if u % 3 == 0:
                        A(f"s_add_u32 s47, s38, {1024*u}\nbuffer_store_dwordx4 v[24:27], v3, s[20:23], s47 offen {cfg.pflag}")
            A("s_barrier")
        arrive()
        for k in range(cfg.xexit):
            A("s_barrier")
        A("s_waitcnt vmcnt(0) lgkmcnt(0)\ns_endpgm")
        assert cfg.pka + cfg.xexit <= NB + 1
        assert cfg.nw == 8 and cfg.kchk + 1 < cfg.pka and not cfg.bissue
    A("L_loader2:\ns_waitcnt vmcnt(0)")
    issued = 0
    vq.clear()

    def issue(upto):
        nonlocal issued
        while issued < min(upto, NS):
            for u in range(2):
                A(f"""
    s_mov_b32 m0, {(issued % RING)*2048 + 1024*u}
    s_add_u32 s47, s46, {w_soff(st[issued], u)}
    buffer_load_dwordx4 v3, s[16:19], s47 offen lds
    """)
                vq.append(issued)
            issued += 1

    landed, freed = 0, -1

    def wait(n):
        nonlocal landed
        if n > landed:
            assert n <= issued, (n, issued)
            idx = max(i for i, x in enumerate(vq) if x == n - 1)
            vq[:] = vq[idx + 1:]
            A(f"s_waitcnt vmcnt({len(vq)})")
            landed = n

    script = cfg.script.split("/")
    for k in range(NB + 1):
        if not cfg.script:
            ahead = max([need[k2] - cfg.slope * (k2 - 1 - k) for k2 in range(k + 1, NB + 1)] + [0])
            issue(max(need[k], cfg.depth0) if k == 0 else min(freed + RING + 1, max(landed + cfg.depth, ahead)))
        for act in (script[k].split(",") if k < len(script) and script[k] else []):
            if act == "B":
                A("s_barrier")
            elif act[0] == "t":
                touch(act[1:])
            elif act[0] == "w":
                wait(int(act[1:]))
            else:
                assert int(act) <= freed + RING + 1, (k, act, freed)
                issue(int(act))
            assert len(vq) < 63
        wait(need[k])
        sbar()
        if k >= 1:
            freed = free_at[k]
    srd_wo()
    A("v_lshlrev_b32 v3, 4, v2")
    wo_dma(21, 41)
    A("s_waitcnt vmcnt(0)")
    sdump(0x8100000)
    A("s_endpgm")

    if cfg.pf:
        A(f"""
L_spare:
    v_lshrrev_b32 v1, 6, v0
    v_and_b32 v2, 63, v0
    s_lshr_b32 s46, s42, 1
    v_readfirstlane_b32 s3, v1
    s_mul_i32 s46, s46, 6
    s_add_u32 s79, s46, s3            ; 0..23
    """)
        line_addr(12, 0, 45, 144)
        line_addr(13, 1080, 45, 144)
        line_addr(14, 0, 45, 72)
        A("s_waitcnt lgkmcnt(0)")
        srd_w()
        set_exec(45)
        for cc in [int(x) for x in cfg.order.split()] + [3]:
            for r in ((12, 13) if cc < 4 else (14,)):
                A(f"s_mov_b32 s47, {18432*cc}\nbuffer_load_dword v16, v{r}, s[16:19], s47 offen {cfg.pfflag}")
    A("""
L_end:
    s_endpgm
.fill 32, 4, 0xbf800000
L_textend:
    """)
    txt = A.text() + f"""
.section .rodata,"a"
.p2align 6
.amdhsa_kernel {NAME}
  .amdhsa_next_free_vgpr {nv}
  .amdhsa_next_free_sgpr 100
  .amdhsa_accum_offset {(nv+3)//4*4}
  .amdhsa_group_segment_fixed_size 0
  .amdhsa_kernarg_size 48
  .amdhsa_user_sgpr_count 2
  .amdhsa_user_sgpr_kernarg_segment_ptr 1
  .amdhsa_system_sgpr_workgroup_id_x 1
.end_amdhsa_kernel
"""
    info = dict(nslots=len(busy), nv=nv, bars=bars, need=need, free=free_at, npre=len(gap_reads[-1]), left=len(pend))
    return txt, info


if __name__ == "__main__":
    cfg = Cfg()
    for a in sys.argv[2:]:
        k, v = a.split("=")
        cur = getattr(cfg, k)
        setattr(cfg, k, v.replace("+", " ") if isinstance(cur, str) else type(cur)(int(v)))
    txt, info = build(cfg)
    open(sys.argv[1], "w").write(txt)
    print(info)
```
